```python
import torch

def _softmax(x, axis=-1):
    return torch.softmax(x, dim=axis)
def _gelu(x):
    return torch.nn.functional.gelu(x, approximate="tanh")
def _silu(x):
    return torch.nn.functional.silu(x)
def _sigmoid(x):
    return torch.sigmoid(x)
def _layernorm(x, axis=-1, eps=1e-5):
    m = x.mean(dim=axis, keepdim=True)
    v = x.var(dim=axis, keepdim=True, unbiased=False)
    return (x - m) / torch.sqrt(v + eps)
def _scatter_add(tgt, idx, src, axis=0):
    return tgt.clone().index_add_(axis, idx, src)
def _segment_sum(src, seg, n):
    out = torch.zeros((n,) + src.shape[1:], dtype=src.dtype)
    return out.index_add_(0, seg, src)
def _pad(x, pw):
    flat = tuple(v for pair in reversed(pw) for v in pair)
    return torch.nn.functional.pad(x, flat)

kernel_name = 'concat_heads__mha_block_cached__mha_block_cached__near_ridge'

def setup_inputs():

    _w = (lambda a: (lambda t: t.to(torch.bfloat16) if t.is_floating_point() else t)(torch.as_tensor(a)))
    def _A_setup():
        B, Sq, D = 8, 96, 448
        H, Sk, Dh = 16, 512, 256
        return {
            "x": _w((lambda *s: torch.randn(*s, dtype=torch.bfloat16) * 0.8)(B, Sq, D)),
            "k_cache": _w((lambda *s: torch.randn(*s, dtype=torch.bfloat16) * 0.8)(B, H, Sk, Dh)),
            "v_cache": _w((lambda *s: torch.randn(*s, dtype=torch.bfloat16) * 0.05)(B, H, Sk, Dh)),
            "wq": _w((lambda *s: torch.randn(*s, dtype=torch.bfloat16) * 0.8)(D, H * Dh) * (D ** -0.5)),
            "wo": _w((lambda *s: torch.randn(*s, dtype=torch.bfloat16) * 0.05)(H * Dh, D) * ((H * Dh) ** -0.5)),
        }
    _A_in = _A_setup()

    def _B_setup():
        B, Sq, D = 8, 96, 448
        H, Sk, Dh = 16, 512, 256
        return {
            "x": _w((lambda *s: torch.randn(*s, dtype=torch.bfloat16) * 0.8)(B, Sq, D)),
            "k_cache": _w((lambda *s: torch.randn(*s, dtype=torch.bfloat16) * 0.8)(B, H, Sk, Dh)),
            "v_cache": _w((lambda *s: torch.randn(*s, dtype=torch.bfloat16) * 0.05)(B, H, Sk, Dh)),
            "wq": _w((lambda *s: torch.randn(*s, dtype=torch.bfloat16) * 0.8)(D, H * Dh) * (D ** -0.5)),
            "wo": _w((lambda *s: torch.randn(*s, dtype=torch.bfloat16) * 0.05)(H * Dh, D) * ((H * Dh) ** -0.5)),
        }
    _B_in = _B_setup()

    return {
        "A_x": _A_in["x"],
        "A_k_cache": _A_in["k_cache"],
        "A_v_cache": _A_in["v_cache"],
        "A_wq": _A_in["wq"],
        "A_wo": _A_in["wo"],
        "B_x": _B_in["x"],
        "B_k_cache": _B_in["k_cache"],
        "B_v_cache": _B_in["v_cache"],
        "B_wq": _B_in["wq"],
        "B_wo": _B_in["wo"],
    }

def reference(A_x, A_k_cache, A_v_cache, A_wq, A_wo, B_x, B_k_cache, B_v_cache, B_wq, B_wo):
    def _A_ref(x, k_cache, v_cache, wq, wo):
        B, Sq, D = x.shape
        H, Dh = 16, 256
        q = (lambda x, *d: x.permute(*d))((x @ wq).reshape(B, Sq, H, Dh), 0, 2, 1, 3)
        scores = torch.einsum("bhqd,bhkd->bhqk", q, k_cache) * (Dh ** -0.5)
        p = _softmax(scores, axis=-1)
        o = torch.einsum("bhqk,bhkd->bhqd", p, v_cache)
        return (lambda x, *d: x.permute(*d))(o, 0, 2, 1, 3).reshape(B, Sq, H * Dh) @ wo

    def _B_ref(x, k_cache, v_cache, wq, wo):
        B, Sq, D = x.shape
        H, Dh = 16, 256
        q = (lambda x, *d: x.permute(*d))((x @ wq).reshape(B, Sq, H, Dh), 0, 2, 1, 3)
        scores = torch.einsum("bhqd,bhkd->bhqk", q, k_cache) * (Dh ** -0.5)
        p = _softmax(scores, axis=-1)
        o = torch.einsum("bhqk,bhkd->bhqd", p, v_cache)
        return (lambda x, *d: x.permute(*d))(o, 0, 2, 1, 3).reshape(B, Sq, H * Dh) @ wo

    a = _A_ref(A_x, A_k_cache, A_v_cache, A_wq, A_wo)
    b = _B_ref(B_x, B_k_cache, B_v_cache, B_wq, B_wo)
    return torch.concatenate([a, b], axis=-1)
```

```python
import sys
NAME = "concat_heads__mha_block_cached__mha_block_cached__near_ridge"

GX, R1, GY, GZ = 0, 32768, 98304, 131072
XS_BASE, XS_SZ = 65536, 6656
LOG2E_16 = 0x3DB8AA3B

class Gen:
    def __init__(self):
        self.L = []
    def A(self, s):
        self.L.append("    " + s)
    def lab(self, s):
        self.L.append(s + ":")
    def c(self, s):
        self.L.append("    ; " + s)

def vr(a, n):
    return f"v[{a}:{a+n-1}]"

def gen(stamps=False, pflag=" nt", wflag="", touch_wo=True, touch_wq=False):
    g = Gen(); A = g.A
    hdr = open("cdna_kernels/" + NAME + ".s.ref").read().split("\n")
    top = [l for l in hdr if l.startswith(";") and "@launch" not in l and "Override" not in l and "grid=ceil" not in l]
    g.L += top
    g.L.append("; @launch kernel=attn_kernel grid=(256,1,1) block=(512,1,1) lds=163840")
    g.L.append("; @launch kernel=red_kernel grid=(336,1,1) block=(256,1,1) lds=0")
    g.L.append('.amdgcn_target "amdgcn-amd-amdhsa--gfx950"')
    g.L.append(".text")
    g.L.append(".globl attn_kernel\n.p2align 8\n.type attn_kernel,@function")
    g.lab("attn_kernel")
    g.lab("L_code_start")
    nst = [0]
    def stamp():
        if stamps:
            A(f"s_memrealtime s[{70+2*nst[0]}:{71+2*nst[0]}]")
            nst[0] += 1
    A("s_cmp_ge_u32 s2, 256")
    A("s_cbranch_scc1 L_end")
    stamp()
    A("s_lshr_b32 s5, s2, 2"); A("s_and_b32 s5, s5, 1")
    A("s_mul_i32 s3, s5, 40")
    A("s_add_u32 s48, s0, s3"); A("s_addc_u32 s49, s1, 0")
    A("s_load_dwordx8 s[32:39], s[48:49], 0")
    A("s_load_dwordx2 s[40:41], s[48:49], 32")
    A("s_load_dwordx2 s[42:43], s[0:1], 96")
    A("s_getpc_b64 s[50:51]")
    A("s_and_b32 s7, s2, 3"); A("s_lshr_b32 s3, s2, 3"); A("s_and_b32 s3, s3, 3")
    A("s_lshl_b32 s3, s3, 2"); A("s_add_u32 s7, s7, s3")
    A("s_lshr_b32 s6, s2, 5")
    A("v_lshrrev_b32 v1, 6, v0")
    A("v_and_b32 v2, 63, v0")
    A("v_readfirstlane_b32 s4, v1")
    A("v_lshlrev_b32 v3, 6, v0")
    A("v_min_u32 v3, CODE_BYTES, v3")
    A("global_load_dword v47, v3, s[50:51]")
    A("v_lshrrev_b32 v3, 5, v2")
    A("v_and_b32 v4, 31, v2")
    A("v_lshrrev_b32 v5, 4, v2")
    A("v_lshrrev_b32 v6, 3, v2")
    A("v_and_b32 v7, 7, v2")
    for i in range(4):
        d = 8 + i
        if i & 1: A(f"v_xor_b32 v{d}, 4, v5")
        else: A(f"v_mov_b32 v{d}, v5")
        A(f"v_xor_b32 v{d}, v{d}, v7")
        A(f"v_lshlrev_b32 v{d}, 4, v{d}")
        A(f"v_lshl_add_u32 v{d}, v6, 9, v{d}")
        if i: A(f"v_add_u32 v{d}, {i*(4096-1024)}, v{d}")
    A("s_waitcnt lgkmcnt(0)")
    A("s_mul_i32 s3, s6, 86016"); A("s_add_u32 s8, s32, s3"); A("s_addc_u32 s9, s33, 0"); A("s_mov_b32 s10, 86016"); A("s_mov_b32 s11, 0x20000")
    A("s_lshl_b32 s3, s7, 9"); A("s_add_u32 s12, s38, s3"); A("s_addc_u32 s13, s39, 0"); A(f"s_mov_b32 s14, {447*8192+512}"); A("s_mov_b32 s15, 0x20000")
    A("s_lshl_b32 s44, s6, 4"); A("s_add_u32 s44, s44, s7")
    A("s_lshl_b32 s3, s44, 18")
    A("s_add_u32 s16, s34, s3"); A("s_addc_u32 s17, s35, 0"); A("s_mov_b32 s18, 262144"); A("s_mov_b32 s19, 0x20000")
    A("s_add_u32 s20, s36, s3"); A("s_addc_u32 s21, s37, 0"); A("s_mov_b32 s22, 262144"); A("s_mov_b32 s23, 0x20000")
    A("s_mul_i32 s3, s7, 229376"); A("s_add_u32 s24, s40, s3"); A("s_addc_u32 s25, s41, 0"); A("s_mov_b32 s26, 229376"); A("s_mov_b32 s27, 0x20000")
    A("s_lshl_b32 s3, s5, 7"); A("s_add_u32 s3, s3, s44"); A("s_mul_i32 s3, s3, 86016")
    A("s_add_u32 s28, s42, s3"); A("s_addc_u32 s29, s43, 0"); A("s_mov_b32 s30, 86016"); A("s_mov_b32 s31, 0x20000")
    A("s_lshl_b32 s45, s4, 12")
    A("s_and_b32 s46, s4, 3")
    A("s_lshl_b32 s3, s46, 16")
    for i in range(4):
        d = 12 + i
        A(f"v_add_u32 v{d}, {(2*i)&3}, v3")
        A(f"v_lshlrev_b32 v{d}, 2, v{d}")
        A(f"v_xor_b32 v{d}, v{d}, v4")
        A(f"v_lshlrev_b32 v{d}, 4, v{d}")
        A(f"v_lshl_add_u32 v{d}, v3, 13, v{d}")
        A(f"v_add_u32 v{d}, s3, v{d}")
        if i: A(f"v_add_u32 v{d}, {i*(16384-1024)}, v{d}")
    A("s_lshl_b32 s3, s46, 1")
    A("v_add_u32 v16, s3, v5"); A("v_xor_b32 v16, v16, v2"); A("v_and_b32 v16, 3, v16"); A("v_lshlrev_b32 v16, 4, v16")
    A("v_lshrrev_b32 v17, 2, v2"); A("s_mul_i32 s3, s46, 24"); A("v_add_u32 v17, s3, v17")
    A("v_mul_u32_u24 v17, 896, v17"); A("v_add_u32 v16, v16, v17")
    A(f"v_add_u32 v17, {16*896-1024}, v16")
    A("s_lshl_b32 s47, s46, 12")
    A(f"s_mul_i32 s52, s46, {24*64}"); A(f"s_add_u32 s52, s52, {XS_BASE}")

    def a_loads(st):
        slot = st & 3
        A(f"s_add_u32 m0, s52, {slot*XS_SZ}")
        A(f"s_mov_b32 s53, {st*64}")
        for i in range(2):
            A(f"buffer_load_dwordx4 v{16+i}, s[8:11], s53 offen offset:{1024*i}{wflag} lds")
        A(f"s_add_u32 m0, s47, {slot*16384}")
        A(f"s_mov_b32 s53, {st*262144}")
        for i in range(4):
            A(f"buffer_load_dwordx4 v{12+i}, s[12:15], s53 offen offset:{1024*i}{wflag} lds")
    KG = [GZ, GY, GX, GZ, GY, GX, GZ, GY]
    def k_fill(i, wreg_m0, wreg_off):
        c, t = i >> 1, i & 1
        A(f"s_add_u32 m0, {wreg_m0}, {KG[i]}")
        A(f"s_add_u32 s53, {wreg_off}, {t*16384 + c*128}")
        for j in range(4):
            A(f"buffer_load_dwordx4 v{8+j}, s[16:19], s53 offen offset:{1024*j} nt lds")

    A("s_cmp_ge_u32 s4, 4")
    A("s_cbranch_scc1 L_roleB0")
    for st in range(3): a_loads(st)
    A("s_branch L_role0_done")
    g.lab("L_roleB0")
    A("s_lshl_b32 s54, s46, 13")
    A("s_lshl_b32 s55, s46, 16")
    A("s_add_u32 s56, s54, 4096"); A("s_add_u32 s57, s55, 32768")
    for i in range(2):
        k_fill(i, "s54", "s55")
        k_fill(i, "s56", "s57")
    g.lab("L_role0_done")
    A("s_lshl_b32 s55, s4, 15")
    A("v_and_b32 v18, 1, v2"); A("v_lshlrev_b32 v18, 4, v18")
    A("v_and_b32 v19, 2, v2"); A("v_lshlrev_b32 v19, 2, v19"); A("v_or_b32 v18, v18, v19")
    A("v_and_b32 v19, 16, v2"); A("v_lshlrev_b32 v19, 1, v19"); A("v_or_b32 v18, v18, v19")
    A("v_lshrrev_b32 v19, 2, v2"); A("v_and_b32 v19, 3, v19")
    A("s_lshl_b32 s3, s4, 6")
    A("v_add_u32 v20, s3, v18")
    A("v_lshlrev_b32 v21, 6, v19"); A("v_xor_b32 v20, v20, v21")
    A("v_lshl_add_u32 v20, v19, 9, v20")
    A("v_lshl_add_u32 v21, v3, 12, v20")
    A("v_lshl_add_u32 v22, v3, 13, v20")
    A(f"v_add_u32 v23, {GZ}, v22")
    A("v_lshrrev_b32 v24, 2, v4"); A("v_and_b32 v24, 3, v24"); A("v_xor_b32 v24, v24, v3"); A("v_lshlrev_b32 v24, 4, v24")
    A("v_lshl_add_u32 v24, v4, 6, v24"); A(f"v_add_u32 v24, {XS_BASE}, v24"); A("v_xor_b32 v25, 32, v24")
    A("v_lshlrev_b32 v28, 4, v2")
    A(f"v_add_u32 v26, {R1}, v28"); A(f"v_add_u32 v27, {R1+65536}, v28")
    A("v_and_b32 v29, 0x13, v4"); A("v_and_b32 v30, 4, v4"); A("v_lshlrev_b32 v30, 1, v30"); A("v_or_b32 v29, v29, v30")
    A("v_and_b32 v30, 8, v4"); A("v_lshrrev_b32 v30, 1, v30"); A("v_or_b32 v29, v29, v30")
    A("v_lshrrev_b32 v30, 1, v29"); A("v_and_b32 v30, 7, v30"); A("v_xor_b32 v30, v30, v3"); A("v_lshlrev_b32 v30, 4, v30")
    A("v_lshl_add_u32 v30, v29, 7, v30"); A("v_add_u32 v30, s45, v30")
    for u in range(1, 4): A(f"v_xor_b32 v{30+u}, {u<<5}, v30")
    for u in range(4): A(f"v_add_u32 v{34+u}, {GY}, v{30+u}")
    A("s_lshl_b32 s3, s4, 11")
    for i in range(2):
        d = 38 + i
        A(f"v_add_u32 v{d}, {2*i}, v3"); A(f"v_lshlrev_b32 v{d}, 2, v{d}"); A(f"v_xor_b32 v{d}, v{d}, v4"); A(f"v_lshlrev_b32 v{d}, 4, v{d}")
        A(f"v_lshl_add_u32 v{d}, v3, 9, v{d}"); A(f"v_add_u32 v{d}, s3, v{d}")
    A("v_and_b32 v40, 1, v5"); A("v_lshlrev_b32 v40, 2, v40"); A("v_xor_b32 v40, v40, v7"); A("v_lshlrev_b32 v40, 4, v40")
    A("v_mul_u32_u24 v41, 896, v6"); A("v_add_u32 v40, v40, v41"); A("s_lshl_b32 s3, s4, 7"); A("v_add_u32 v40, s3, v40")
    A(f"v_add_u32 v41, {8*896-1024}, v40")
    A("v_lshrrev_b32 v42, 1, v19"); A("v_lshlrev_b32 v42, 6, v42"); A("v_xor_b32 v42, v42, v18")
    A("v_lshl_add_u32 v42, v19, 7, v42"); A("v_lshl_add_u32 v42, v3, 10, v42"); A("v_add_u32 v42, s45, v42")
    A("v_xor_b32 v43, 64, v42"); A(f"v_add_u32 v44, {GZ}, v42"); A(f"v_add_u32 v45, {GZ}, v43")

    ACC = 48
    def a_reads(st):
        slot = st & 3; base = 96 + 32 * (st & 1)
        for u in range(2):
            for e in range(2):
                A(f"ds_read_b64_tr_b16 {vr(base+4*u+2*e,2)}, v21 offset:{slot*16384 + (16*u+4*e)*512}")
            for t in range(3):
                A(f"ds_read_b128 {vr(base+8+12*u+4*t,4)}, v{24+u} offset:{slot*XS_SZ + t*2048}")
    def a_mfma(st):
        base = 96 + 32 * (st & 1)
        for u in range(2):
            for t in range(3):
                cin = "0" if (st == 0 and u == 0) else vr(ACC+16*t,16)
                A(f"v_mfma_f32_32x32x16_bf16 {vr(ACC+16*t,16)}, {vr(base+4*u,4)}, {vr(base+8+12*u+4*t,4)}, {cin}")
    NA = 14
    for st in range(NA):
        g.c(f"A stage {st}")
        A("s_cmp_ge_u32 s4, 4")
        A(f"s_cbranch_scc1 L_a{st}_b")
        younger = min(2, NA - 1 - st)
        A(f"s_waitcnt vmcnt({6*younger})")
        A("s_barrier")
        if st + 3 < NA: a_loads(st + 3)
        A(f"s_branch L_a{st}_j")
        g.lab(f"L_a{st}_b")
        A("s_barrier")
        g.lab(f"L_a{st}_j")
        a_reads(st)
        if st > 0: a_mfma(st - 1)
        A("s_waitcnt lgkmcnt(0)")
    A("s_barrier")
    k_fill(2, "s45", "s55")
    a_mfma(NA - 1)
    A("s_nop 15")
    A(f"s_mul_i32 s3, s4, {6*1024}")
    A("v_add_u32 v46, s3, v26")
    for t in range(3):
        for a in range(2):
            d = 160 + (t * 2 + a) * 4
            for j in range(4):
                s = ACC + 16 * t + 8 * a + 2 * j
                A(f"v_cvt_pk_bf16_f32 v{d+j}, v{s}, v{s+1}")
            A(f"ds_write_b128 v46, {vr(d,4)} offset:{(a*3+t)*1024}")
    A("s_waitcnt vmcnt(4) lgkmcnt(0)")
    A("s_barrier")
    stamp()
    QR, KR = 144, 192
    def ring_m0(n):
        grp = GZ if (n >> 1) & 1 else GX
        return grp + (n & 1) * 2048
    def v_fill(n):
        A(f"s_add_u32 m0, s45, {ring_m0(n)}")
        if n < 16:
            A(f"s_mov_b32 s53, {n*16384}")
            for i in range(2):
                A(f"buffer_load_dwordx4 v{38+i}, s[20:23], s53 offen offset:{1024*i} nt lds")
        else:
            A(f"s_mov_b32 s53, {(n-16)*16*896}")
            for i in range(2):
                A(f"buffer_load_dwordx4 v{40+i}, s[24:27], s53 offen offset:{1024*i}{wflag} lds")
    def q_reads(c):
        for u in range(4):
            for t in range(3):
                A(f"ds_read_b128 {vr(QR+(u*3+t)*4,4)}, v26 offset:{((4*c+u)*3+t)*1024}")
    q_reads(0)
    for i in range(8):
        c, t = i >> 1, i & 1
        g.c(f"B fill {i}")
        if i >= 2: A("s_waitcnt vmcnt(8)")
        for u in range(4):
            if KG[i] == GX: A(f"ds_read_b128 {vr(KR+4*u,4)}, v{30+u}")
            else: A(f"ds_read_b128 {vr(KR+4*u,4)}, v{34+u} offset:{KG[i]-GY}")
        A("s_waitcnt lgkmcnt(0)")
        if i + 3 < 8: k_fill(i + 3, "s45", "s55")
        elif i == 5: v_fill(0); v_fill(1)
        elif i == 6: v_fill(2); v_fill(3)
        for u in range(4):
            for qt in range(3):
                acc = ACC + (t * 3 + qt) * 16
                cin = "0" if (c == 0 and u == 0) else vr(acc, 16)
                A(f"v_mfma_f32_32x32x16_bf16 {vr(acc,16)}, {vr(KR+4*u,4)}, {vr(QR+(u*3+qt)*4,4)}, {cin}")
        if t == 1 and c < 3: q_reads(c + 1)
    stamp()
    A("s_nop 15")
    MX = 192
    for qt in range(3):
        regs = [ACC + qt * 16 + r for r in range(16)] + [ACC + (3 + qt) * 16 + r for r in range(16)]
        A(f"v_max3_f32 v{MX+qt}, v{regs[0]}, v{regs[1]}, v{regs[2]}")
        k = 3
        while k + 1 < 32:
            A(f"v_max3_f32 v{MX+qt}, v{MX+qt}, v{regs[k]}, v{regs[k+1]}"); k += 2
        A(f"v_max_f32 v{MX+qt}, v{MX+qt}, v{regs[31]}")
    for qt in range(3): A(f"v_mov_b32 v{MX+3+qt}, v{MX+qt}")
    A("s_nop 1")
    for qt in range(3): A(f"v_permlane32_swap_b32 v{MX+3+qt}, v{MX+qt}")
    A("s_nop 1")
    for qt in range(3): A(f"v_max_f32 v{MX+qt}, v{MX+qt}, v{MX+3+qt}")
    SCR = R1 + 49152
    A("v_lshlrev_b32 v200, 5, v4"); A(f"v_add_u32 v200, {SCR}, v200")
    A("s_lshl_b32 s3, s4, 2"); A("v_add_u32 v201, s3, v200")
    for qt in range(3): A(f"ds_write_b32 v201, v{MX+qt} offset:{qt*1024}")
    A("s_waitcnt lgkmcnt(0)")
    A("s_barrier")
    for qt in range(3):
        for k in range(2):
            A(f"ds_read_b128 {vr(204+qt*8+k*4,4)}, v200 offset:{qt*1024+k*16}")
    A(f"s_mov_b32 s58, 0x{LOG2E_16:x}"); A(f"s_mov_b32 s59, 0x{LOG2E_16:x}")
    A("s_waitcnt lgkmcnt(0)")
    A("s_barrier")
    for qt in range(3):
        b = 204 + qt * 8
        A(f"v_max3_f32 v{b}, v{b}, v{b+1}, v{b+2}"); A(f"v_max3_f32 v{b}, v{b}, v{b+3}, v{b+4}"); A(f"v_max3_f32 v{b}, v{b}, v{b+5}, v{b+6}")
        A(f"v_max_f32 v{b}, v{b}, v{b+7}")
        A(f"v_mul_f32 v{b}, s58, v{b}")
        A(f"v_sub_f32 v{b}, 0, v{b}")
        A(f"v_mov_b32 v{b+1}, v{b}")
        A(f"v_mov_b32 v{228+2*qt}, 0"); A(f"v_mov_b32 v{229+2*qt}, 0")
    A(f"s_mul_i32 s3, s4, {12*1024}")
    A("v_add_u32 v46, s3, v26")
    for t in range(2):
        for qt in range(3):
            acc = ACC + (t * 3 + qt) * 16
            nb = 204 + qt * 8
            for r in range(0, 16, 2):
                A(f"v_pk_fma_f32 {vr(acc+r,2)}, {vr(acc+r,2)}, s[58:59], {vr(nb,2)}")
            for r in range(16):
                A(f"v_exp_f32 v{acc+r}, v{acc+r}")
            A("s_nop 0")
            for f in range(2):
                d = 144 + ((t * 3 + qt) * 2 + f) * 4
                for j in range(4):
                    s = acc + 8 * f + 2 * j
                    A(f"v_cvt_pk_bf16_f32 v{d+j}, v{s}, v{s+1}")
                A(f"ds_write_b128 v46, {vr(d,4)} offset:{((2*t+f)*3+qt)*1024}")
            for r in range(0, 16, 2):
                A(f"v_pk_add_f32 {vr(228+2*qt,2)}, {vr(228+2*qt,2)}, {vr(acc+r,2)}")
    for qt in range(3): A(f"v_add_f32 v{228+2*qt}, v{228+2*qt}, v{229+2*qt}")
    for qt in range(3): A(f"v_mov_b32 v{229+2*qt}, v{228+2*qt}")
    A("s_nop 1")
    for qt in range(3): A(f"v_permlane32_swap_b32 v{229+2*qt}, v{228+2*qt}")
    A("s_nop 1")
    for qt in range(3): A(f"v_add_f32 v{228+2*qt}, v{228+2*qt}, v{229+2*qt}")
    A("s_waitcnt lgkmcnt(0)")
    stamp()
    PB, VF = 96, 144
    def p_reads(s):
        base = PB + 24 * (s & 1)
        for u in range(2):
            for qt in range(3):
                f = (2 * s + u) * 3 + qt
                if f < 64: A(f"ds_read_b128 {vr(base+(u*3+qt)*4,4)}, v26 offset:{f*1024}")
                else: A(f"ds_read_b128 {vr(base+(u*3+qt)*4,4)}, v27 offset:{(f-64)*1024}")
    extra = 0
    for s in range(16):
        g.c(f"D stage {s}")
        n = 6 if s == 0 else 4
        if touch_wo and s in (3, 4, 5): n += 4
        A(f"s_waitcnt vmcnt({n})")
        A("s_barrier")
        va = 23 if (s >> 1) & 1 else 22
        for u in range(2):
            for e in range(2):
                A(f"ds_read_b64_tr_b16 {vr(VF+4*u+2*e,2)}, v{va} offset:{(4*u+e)*4096 + (s&1)*2048}")
        if s == 0: p_reads(0)
        if s >= 1: v_fill(s + 3)
        if touch_wo and s == 2:
            A("s_lshl_b32 s3, s4, 15"); A("v_lshlrev_b32 v240, 7, v2"); A("v_add_u32 v240, s3, v240")
            for j in range(4):
                A(f"s_mov_b32 s53, {j*8192}")
                A(f"buffer_load_dword v{241+j}, v240, s[24:27], s53 offen")
        if s == 11:
            for qt in range(3): A(f"ds_write_b32 v201, v{228+2*qt} offset:{qt*1024}")
        if s == 13:
            for qt in range(3):
                for k in range(2):
                    A(f"ds_read_b128 {vr(204+qt*8+k*4,4)}, v200 offset:{qt*1024+k*16}")
        A("s_waitcnt lgkmcnt(0)")
        if s < 15: p_reads(s + 1)
        base = PB + 24 * (s & 1)
        for u in range(2):
            for qt in range(3):
                cin = "0" if (s == 0 and u == 0) else vr(ACC + 16 * qt, 16)
                A(f"v_mfma_f32_32x32x16_bf16 {vr(ACC+16*qt,16)}, {vr(VF+4*u,4)}, {vr(base+(u*3+qt)*4,4)}, {cin}")
        if s == 13:
            for qt in range(3):
                b = 204 + qt * 8
                for k in range(1, 8): A(f"v_add_f32 v{b}, v{b}, v{b+k}")
                A(f"v_rcp_f32 v{b}, v{b}")
                A("s_nop 0")
                A(f"v_mov_b32 v{b+1}, v{b}")
    stamp()
    A("s_nop 15")
    A(f"s_mul_i32 s3, s4, {6*1024}")
    A("v_add_u32 v46, s3, v26")
    for qt in range(3):
        for r in range(0, 16, 2):
            A(f"v_pk_mul_f32 {vr(ACC+16*qt+r,2)}, {vr(ACC+16*qt+r,2)}, {vr(204+qt*8,2)}")
        for a in range(2):
            d = 160 + (qt * 2 + a) * 4
            for j in range(4):
                s = ACC + 16 * qt + 8 * a + 2 * j
                A(f"v_cvt_pk_bf16_f32 v{d+j}, v{s}, v{s+1}")
            A(f"ds_write_b128 v46, {vr(d,4)} offset:{(a*3+qt)*1024}")
    A("s_waitcnt lgkmcnt(0)")
    A("s_barrier")
    A("s_cmp_eq_u32 s4, 7")
    A("s_cbranch_scc1 L_fin")
    v_fill(19)
    OF, WF = 144, 168
    def e_reads(u):
        n = 16 + u
        gz = (n >> 1) & 1
        for ct in range(2):
            for e in range(2):
                A(f"ds_read_b64_tr_b16 {vr(WF+8*(u&1)+4*ct+2*e,2)}, v{42+2*gz+ct} offset:{e*512+(n&1)*2048}")
        for qt in range(3):
            A(f"ds_read_b128 {vr(OF+12*(u&1)+4*qt,4)}, v26 offset:{(u*3+qt)*1024}")
    def e_mfma(u):
        for ct in range(2):
            for qt in range(3):
                acc = ACC + (ct * 3 + qt) * 16
                cin = "0" if u == 0 else vr(acc, 16)
                A(f"v_mfma_f32_32x32x16_bf16 {vr(acc,16)}, {vr(WF+8*(u&1)+4*ct,4)}, {vr(OF+12*(u&1)+4*qt,4)}, {cin}")
    for u in range(16):
        g.c(f"E step {u}")
        issued = min(19 + u, 31) if u > 0 else 19
        A(f"s_waitcnt vmcnt({2*(issued-(16+u))})")
        e_reads(u)
        if u > 0: e_mfma(u - 1)
        A("s_waitcnt lgkmcnt(0)")
        if 20 + u <= 31: v_fill(20 + u)
    e_mfma(15)
    stamp()
    A("s_nop 15")
    A(f"s_mul_i32 s53, s4, {12*1024}")
    for ct in range(2):
        for qt in range(3):
            acc = ACC + (ct * 3 + qt) * 16
            for a in range(2):
                k = (ct * 3 + qt) * 2 + a
                d = 144 + k * 4
                for j in range(4):
                    s = acc + 8 * a + 2 * j
                    A(f"v_cvt_pk_bf16_f32 v{d+j}, v{s}, v{s+1}")
                if k % 4 == 0 and k: A("s_add_u32 s53, s53, 4096")
                A(f"buffer_store_dwordx4 {vr(d,4)}, v28, s[28:31], s53 offen offset:{(k%4)*1024}{pflag}")
    g.lab("L_fin")
    if stamps:
        A("s_waitcnt vmcnt(0)")
        stamp()
        A("s_waitcnt lgkmcnt(0)")
        A("s_cmp_lg_u32 s4, 0")
        A("s_cbranch_scc1 L_end")
        A("s_add_u32 s42, s42, 0x8000000"); A("s_addc_u32 s43, s43, 0")
        A(f"s_mul_i32 s3, s2, {8*(nst[0]+2)}")
        A("v_mov_b32 v10, s3")
        for j in range(nst[0]):
            A(f"v_mov_b32 v12, s{70+2*j}"); A(f"v_mov_b32 v13, s{71+2*j}")
            A(f"global_store_dwordx2 v10, v[12:13], s[42:43] offset:{j*8}")
            A("s_nop 1")
    g.lab("L_end")
    A("s_endpgm")
    g.lab("L_code_end")
    g.L.append(".globl red_kernel\n.p2align 8\n.type red_kernel,@function")
    g.lab("red_kernel")
    A("s_cmp_ge_u32 s2, 336")
    A("s_cbranch_scc1 L_end2")
    if stamps: A("s_memrealtime s[40:41]")
    A("s_load_dwordx2 s[36:37], s[0:1], 96")
    A("s_load_dwordx2 s[38:39], s[0:1], 80")
    A("s_mul_i32 s3, s2, 3121"); A("s_lshr_b32 s3, s3, 16")
    A("s_mul_i32 s4, s3, 21"); A("s_sub_u32 s4, s2, s4")
    A("s_mul_i32 s5, s4, 43"); A("s_lshr_b32 s5, s5, 7")
    A("s_mul_i32 s6, s5, 3"); A("s_sub_u32 s6, s4, s6")
    A("v_lshrrev_b32 v1, 6, v0"); A("v_and_b32 v2, 63, v0")
    A("v_lshrrev_b32 v3, 1, v1"); A("v_and_b32 v4, 1, v1")
    A("s_mul_i32 s7, s5, 12"); A("s_lshl_b32 s8, s6, 1"); A("s_add_u32 s7, s7, s8")
    A("v_mul_u32_u24 v5, 6, v3"); A("v_add_u32 v5, v5, v4"); A("v_add_u32 v5, s7, v5")
    A("v_lshlrev_b32 v5, 10, v5"); A("v_lshl_add_u32 v5, v2, 4, v5")
    A(f"s_mul_i32 s9, s3, {16*86016}")
    A("s_waitcnt lgkmcnt(0)")
    A("s_add_u32 s12, s36, s9"); A("s_addc_u32 s13, s37, 0"); A(f"s_mov_b32 s14, {16*86016}"); A("s_mov_b32 s15, 0x20000")
    for h in range(16):
        A(f"s_mov_b32 s20, {h*86016}")
        A(f"buffer_load_dwordx4 {vr(16+4*h,4)}, v5, s[12:15], s20 offen")
    A("s_mov_b32 s16, s38"); A("s_mov_b32 s17, s39"); A(f"s_mov_b32 s18, {8*96*896*2}"); A("s_mov_b32 s19, 0x20000")
    A("s_and_b32 s8, s3, 7"); A("s_mul_i32 s8, s8, 96"); A("s_lshl_b32 s9, s6, 5"); A("s_add_u32 s8, s8, s9")
    A("v_and_b32 v6, 31, v2"); A("v_add_u32 v6, s8, v6"); A("v_mul_u32_u24 v6, 1792, v6")
    A("s_lshr_b32 s8, s3, 3"); A("s_mul_i32 s8, s8, 896"); A("s_lshl_b32 s9, s5, 7"); A("s_add_u32 s8, s8, s9")
    A("v_add_u32 v6, s8, v6")
    A("v_lshlrev_b32 v7, 5, v1"); A("v_add_u32 v6, v6, v7")
    A("v_lshrrev_b32 v7, 5, v2"); A("v_lshl_add_u32 v6, v7, 4, v6")
    A("s_mov_b32 s21, 0xffff0000")
    for h in range(16):
        A(f"s_waitcnt vmcnt({15-h})")
        for j in range(4):
            s = 16 + 4 * h + j
            if h == 0:
                A(f"v_lshlrev_b32 v{80+2*j}, 16, v{s}")
                A(f"v_and_b32 v{81+2*j}, s21, v{s}")
            else:
                A(f"v_lshlrev_b32 v8, 16, v{s}")
                A(f"v_and_b32 v9, s21, v{s}")
                A(f"v_pk_add_f32 {vr(80+2*j,2)}, {vr(80+2*j,2)}, v[8:9]")
    for j in range(4):
        A(f"v_cvt_pk_bf16_f32 v{12+j}, v{80+2*j}, v{81+2*j}")
    A("buffer_store_dwordx4 v[12:15], v6, s[16:19], 0 offen")
    if stamps:
        A("s_waitcnt vmcnt(0)")
        A("s_memrealtime s[42:43]")
        A("s_waitcnt lgkmcnt(0)")
        A("s_cmp_ge_u32 s2, 256")
        A("s_cbranch_scc1 L_end2")
        A("s_add_u32 s36, s36, 0x8000000"); A("s_addc_u32 s37, s37, 0")
        A(f"s_mul_i32 s3, s2, {8*(nst[0]+2)}")
        A("v_mov_b32 v10, s3")
        for j, r in ((nst[0], 40), (nst[0] + 1, 42)):
            A(f"v_mov_b32 v12, s{r}"); A(f"v_mov_b32 v13, s{r+1}")
            A(f"global_store_dwordx2 v10, v[12:13], s[36:37] offset:{j*8}")
            A("s_nop 1")
    g.lab("L_end2")
    A("s_endpgm")
    g.L.append('.section .rodata,"a"')
    for kn, nv in (("attn_kernel", 256), ("red_kernel", 96)):
        g.L.append(f""".p2align 6
.amdhsa_kernel {kn}
  .amdhsa_next_free_vgpr {nv}
  .amdhsa_next_free_sgpr 96
  .amdhsa_accum_offset {nv}
  .amdhsa_group_segment_fixed_size 0
  .amdhsa_kernarg_size 104
  .amdhsa_user_sgpr_count 2
  .amdhsa_user_sgpr_kernarg_segment_ptr 1
  .amdhsa_system_sgpr_workgroup_id_x 1
.end_amdhsa_kernel""")
    return "\n".join(g.L) + "\n", nst[0] + 2

def finalize(s):
    import subprocess, re, tempfile, os
    t = s.replace("CODE_BYTES", "0x1000")
    with tempfile.TemporaryDirectory() as d:
        open(d + "/t.s", "w").write(t)
        subprocess.check_call(["clang", "-x", "assembler", "-target", "amdgcn-amd-amdhsa", "-mcpu=gfx950", "-c", d + "/t.s", "-o", d + "/t.o"])
        o = subprocess.check_output(["llvm-objdump", "-t", d + "/t.o"]).decode()
    sym = {l.split()[-1]: int(l.split()[0], 16) for l in o.splitlines() if re.match(r"^[0-9a-f]{16} ", l)}
    n = sym["L_code_end"] - sym["L_code_start"] - 128
    assert n > 0x100
    return s.replace("CODE_BYTES", hex(n))

if __name__ == "__main__":
    s, n = gen(stamps=False)
    open("k1.s", "w").write(finalize(s))
    s, n = gen(stamps=True)
    open("k1_st.s", "w").write(finalize(s))
    print("stamps", n)
```

```python
import sys, re, subprocess, tempfile
NAME = "concat_heads__mha_block_cached__mha_block_cached__near_ridge"
KN = NAME + "_kernel"
K1 = 1024
GX, GY, GZ = 64*K1, 96*K1, 128*K1
XS_BASE, XS_SZ = 64*K1, 6400
SCR_SUM, SCR_MAX = 32*K1, 48*K1
O_BASE = 32*K1
LOG2E_16 = 0x3DB8AA3B

def vr(a, n): return f"v[{a}:{a+n-1}]"

class Gen:
    def __init__(self):
        self.L = []; self.vq = []; self.lq = []
    def A(self, s): self.L.append("    " + s)
    def lab(self, s): self.L.append(s + ":")
    def c(self, s): self.L.append("    ; " + s)
    def vm(self, s, tag): self.A(s); self.vq.append(tag)
    def vwait_n(self, tags):
        idx = max([i for i, t in enumerate(self.vq) if t in tags], default=-1)
        if idx < 0: return None
        n = len(self.vq) - 1 - idx
        self.vq = self.vq[idx+1:]
        return n
    def vwait(self, *tags):
        n = self.vwait_n(tags)
        if n is not None:
            assert n <= 63
            self.A(f"s_waitcnt vmcnt({n})")
    def vdone(self, tag): return tag not in self.vq
    def ds(self, s, tag=None): self.A(s); self.lq.append(tag)
    def lwait(self, *tags):
        idx = max([i for i, t in enumerate(self.lq) if t in tags], default=-1)
        if idx < 0: return
        n = len(self.lq) - 1 - idx
        self.lq = self.lq[idx+1:]
        self.A(f"s_waitcnt lgkmcnt({min(n,15)})")
    def lwait0(self):
        self.lq = []; self.A("s_waitcnt lgkmcnt(0)")

def interleave(g, mf, oth, pre=0):
    for f in oth[:pre]: f()
    oth = oth[pre:]
    n = len(mf)
    k = 0
    for i, m in enumerate(mf):
        m()
        upto = (len(oth) * (i + 1) + n - 1) // n
        while k < upto: oth[k](); k += 1
    while k < len(oth): oth[k](); k += 1

def gen(stamps=(), swave=0, wflag="", kinit=2, kpat=None, sflag=" sc1", prio=False):
    g = Gen(); A = g.A
    if kpat is None: kpat = [1]*14
    hdr = open("cdna_kernels/" + NAME + ".s.ref").read().split("\n")
    g.L += [l for l in hdr if l.startswith(";") and "@launch" not in l]
    g.L.append("; @launch grid=(256,1,1) block=(512,1,1) lds=163840")
    g.L.append('.amdgcn_target "amdgcn-amd-amdhsa--gfx950"\n.text')
    g.L.append(f".globl {KN}\n.p2align 8\n.type {KN},@function")
    g.lab(KN); g.lab("L_code_start")
    nst = [0]
    def stamp(name):
        if name in stamps:
            A(f"s_memrealtime s[{64+2*nst[0]}:{65+2*nst[0]}]"); nst[0] += 1
    A("s_cmp_ge_u32 s2, 256")
    A("s_cbranch_scc1 L_end")
    stamp("start")
    A("s_lshr_b32 s5, s2, 2"); A("s_and_b32 s5, s5, 1")
    A("s_mul_i32 s3, s5, 40")
    A("s_add_u32 s48, s0, s3"); A("s_addc_u32 s49, s1, 0")
    A("s_load_dwordx8 s[32:39], s[48:49], 0")
    A("s_load_dwordx2 s[40:41], s[48:49], 32")
    A("s_load_dwordx4 s[60:63], s[0:1], 80")
    A("s_load_dwordx2 s[42:43], s[0:1], 96")
    A("s_getpc_b64 s[50:51]")
    A("v_lshlrev_b32 v1, 6, v0")
    A("v_min_u32 v1, CODE_BYTES, v1")
    g.vm("global_load_dword v47, v1, s[50:51]", "code")
    A("v_lshrrev_b32 v1, 6, v0")
    A("v_and_b32 v2, 63, v0")
    A("v_readfirstlane_b32 s4, v1")
    A("s_and_b32 s7, s2, 3"); A("s_lshr_b32 s3, s2, 3"); A("s_and_b32 s3, s3, 3")
    A("s_lshl_b32 s3, s3, 2"); A("s_add_u32 s7, s7, s3")
    A("s_lshr_b32 s6, s2, 5")
    A("v_lshrrev_b32 v3, 5, v2"); A("v_and_b32 v4, 31, v2"); A("v_lshrrev_b32 v5, 4, v2")
    for i in range(2):
        d = 28 + i
        A(f"v_add_u32 v{d}, {2*i}, v3"); A(f"v_lshlrev_b32 v{d}, 2, v{d}"); A(f"v_xor_b32 v{d}, v{d}, v4"); A(f"v_lshlrev_b32 v{d}, 4, v{d}")
    A("v_lshl_add_u32 v6, v1, 2, v3")
    A("v_lshl_add_u32 v12, v6, 13, v28")
    A("v_lshl_add_u32 v13, v6, 13, v29"); A(f"v_add_u32 v13, {16384-1024}, v13")
    A("v_lshl_add_u32 v28, v6, 9, v28"); A("v_lshl_add_u32 v29, v6, 9, v29")
    A("v_mul_u32_u24 v7, 3, v1"); A("v_add_u32 v14, v7, v5"); A("v_xor_b32 v14, v14, v2"); A("v_and_b32 v14, 3, v14"); A("v_lshlrev_b32 v14, 4, v14")
    A("v_lshrrev_b32 v6, 2, v2"); A("v_lshl_add_u32 v6, v7, 2, v6"); A("v_mul_u32_u24 v6, 896, v6"); A("v_add_u32 v14, v14, v6")
    A("s_lshl_b32 s47, s4, 11")
    A(f"s_mul_i32 s52, s4, 768"); A(f"s_add_u32 s52, s52, {XS_BASE}")
    A("s_lshl_b32 s45, s4, 12")
    A("s_lshl_b32 s55, s4, 15")
    A("s_mov_b32 s10, 86016"); A("s_mov_b32 s11, 0x20000"); A(f"s_mov_b32 s14, {447*8192+512}"); A("s_mov_b32 s15, 0x20000")
    A("s_mul_i32 s56, s6, 86016"); A("s_lshl_b32 s57, s7, 9")
    A("s_lshl_b32 s44, s6, 4"); A("s_add_u32 s44, s44, s7"); A("s_lshl_b32 s46, s44, 18")
    A("v_lshrrev_b32 v6, 3, v2"); A("v_and_b32 v7, 7, v2")
    for i in range(4):
        d = 8 + i
        if i & 1: A(f"v_xor_b32 v{d}, 4, v5"); A(f"v_xor_b32 v{d}, v{d}, v7")
        else: A(f"v_xor_b32 v{d}, v5, v7")
        A(f"v_lshlrev_b32 v{d}, 4, v{d}")
        A(f"v_lshl_add_u32 v{d}, v6, 9, v{d}")
        if i: A(f"v_add_u32 v{d}, {i*(4096-1024)}, v{d}")
    A("s_waitcnt lgkmcnt(0)")
    A("s_add_u32 s8, s32, s56"); A("s_addc_u32 s9, s33, 0")
    A("s_add_u32 s12, s38, s57"); A("s_addc_u32 s13, s39, 0")

    def a_load_thunks(st):
        slot = st & 3
        def x():
            A(f"s_add_u32 m0, s52, {slot*XS_SZ}"); A(f"s_mov_b32 s53, {st*64}")
            g.vm(f"buffer_load_dwordx4 v14, s[8:11], s53 offen{wflag} lds", f"A{st}")
        def w0():
            A(f"s_add_u32 m0, s47, {slot*16384}"); A(f"s_mov_b32 s53, {st*262144}")
            g.vm(f"buffer_load_dwordx4 v12, s[12:15], s53 offen{wflag} lds", f"A{st}")
        def w1():
            g.vm(f"buffer_load_dwordx4 v13, s[12:15], s53 offen offset:1024{wflag} lds", f"A{st}")
        return [x, w0, w1]
    for st in range(3):
        for f in a_load_thunks(st): f()
    A("s_add_u32 s16, s34, s46"); A("s_addc_u32 s17, s35, 0"); A("s_mov_b32 s18, 262144"); A("s_mov_b32 s19, 0x20000")
    KG = [GZ, GY, GZ, GY, GX, GZ, GY, GX]
    kp = [0]
    def k_issue(n):
        while n > 0:
            j = kp[0] >> 2; c, t = j >> 1, j & 1
            A(f"s_add_u32 m0, s45, {KG[j]}"); A(f"s_add_u32 s53, s55, {t*16384 + c*128}")
            while n > 0:
                i = kp[0] & 3
                g.vm(f"buffer_load_dwordx4 v{8+i}, s[16:19], s53 offen offset:{1024*i} nt lds", f"F{j}")
                kp[0] += 1; n -= 1
                if kp[0] & 3 == 0: break
    k_issue(kinit)
    A("s_add_u32 s20, s36, s46"); A("s_addc_u32 s21, s37, 0"); A("s_mov_b32 s22, 262144"); A("s_mov_b32 s23, 0x20000")
    A("s_mul_i32 s3, s7, 229376"); A("s_add_u32 s24, s40, s3"); A("s_addc_u32 s25, s41, 0"); A("s_mov_b32 s26, 229376"); A("s_mov_b32 s27, 0x20000")
    A("s_lshl_b32 s54, s5, 3"); A("s_add_u32 s54, s54, s6")
    A(f"s_mul_i32 s3, s54, {16*86016}")
    A("s_add_u32 s28, s42, s3"); A("s_addc_u32 s29, s43, 0"); A(f"s_mov_b32 s30, {16*86016}"); A("s_mov_b32 s31, 0x20000")
    A("v_and_b32 v42, 1, v2"); A("v_lshlrev_b32 v42, 4, v42")
    A("v_and_b32 v43, 2, v2"); A("v_lshlrev_b32 v43, 2, v43"); A("v_or_b32 v42, v42, v43")
    A("v_and_b32 v43, 16, v2"); A("v_lshlrev_b32 v43, 1, v43"); A("v_or_b32 v42, v42, v43")
    A("v_lshrrev_b32 v43, 2, v2"); A("v_and_b32 v43, 3, v43")
    A("v_lshl_add_u32 v44, v1, 6, v42")
    A("v_lshlrev_b32 v45, 6, v43"); A("v_xor_b32 v44, v44, v45")
    A("v_lshl_add_u32 v44, v43, 9, v44")
    A("v_lshl_add_u32 v15, v3, 12, v44")
    A("v_lshl_add_u32 v30, v3, 13, v44"); A(f"v_add_u32 v30, {GY}, v30")
    A("v_lshrrev_b32 v16, 2, v4"); A("v_and_b32 v16, 3, v16"); A("v_xor_b32 v16, v16, v3"); A("v_lshlrev_b32 v16, 4, v16")
    A("v_lshl_add_u32 v16, v4, 6, v16"); A(f"v_add_u32 v16, {XS_BASE}, v16"); A("v_xor_b32 v17, 32, v16")
    A("v_lshlrev_b32 v18, 4, v2"); A("v_add_u32 v19, 0x10000, v18")
    A("v_and_b32 v44, 0x13, v4"); A("v_and_b32 v20, 4, v4"); A("v_lshlrev_b32 v20, 1, v20"); A("v_or_b32 v44, v44, v20")
    A("v_and_b32 v20, 8, v4"); A("v_lshrrev_b32 v20, 1, v20"); A("v_or_b32 v44, v44, v20")
    A("v_lshrrev_b32 v20, 1, v44"); A("v_and_b32 v20, 7, v20"); A("v_xor_b32 v20, v20, v3"); A("v_lshlrev_b32 v20, 4, v20")
    A("v_lshl_add_u32 v20, v44, 7, v20"); A("v_lshl_add_u32 v20, v1, 12, v20"); A(f"v_add_u32 v20, {GX}, v20")
    for u in range(1, 4): A(f"v_xor_b32 v{20+u}, {u<<5}, v20")
    for u in range(4): A(f"v_add_u32 v{24+u}, {GZ-GX}, v{20+u}")
    A("v_and_b32 v31, 1, v5"); A("v_lshlrev_b32 v31, 2, v31"); A("v_xor_b32 v31, v31, v7"); A("v_lshlrev_b32 v31, 4, v31")
    A("v_mul_u32_u24 v32, 896, v6"); A("v_add_u32 v31, v31, v32"); A("v_lshl_add_u32 v31, v1, 7, v31")
    A(f"v_add_u32 v32, {8*896-1024}, v31")
    A("v_lshrrev_b32 v33, 1, v43"); A("v_lshlrev_b32 v33, 6, v33"); A("v_xor_b32 v33, v33, v42")
    A("v_lshl_add_u32 v33, v43, 7, v33"); A("v_lshl_add_u32 v33, v3, 10, v33"); A("v_lshl_add_u32 v33, v1, 12, v33")
    A("v_xor_b32 v34, 64, v33"); A(f"v_add_u32 v35, {GY}, v33"); A(f"v_add_u32 v36, {GY}, v34")
    A("v_lshlrev_b32 v37, 5, v4"); A(f"v_add_u32 v37, {SCR_SUM}, v37"); A("v_lshl_add_u32 v38, v1, 2, v37")
    A("s_mul_i32 s3, s7, 5376"); A("v_lshlrev_b32 v40, 4, v0"); A("v_add_u32 v40, s3, v40")
    A("v_lshrrev_b32 v42, 10, v40")
    A("v_mul_u32_u24 v43, 43, v42"); A("v_lshrrev_b32 v43, 9, v43")
    A("v_mul_u32_u24 v44, 12, v43"); A("v_sub_u32 v42, v42, v44")
    A("v_mul_u32_u24 v44, 43, v42"); A("v_lshrrev_b32 v44, 8, v44")
    A("v_mul_u32_u24 v45, 6, v44"); A("v_sub_u32 v42, v42, v45")
    A("v_lshlrev_b32 v41, 7, v43"); A("v_lshl_add_u32 v41, v44, 6, v41")
    A("v_and_b32 v45, 1, v42"); A("v_lshl_add_u32 v41, v45, 5, v41")
    A("v_bfe_u32 v45, v40, 9, 1"); A("v_lshl_add_u32 v41, v45, 4, v41")
    A("v_lshrrev_b32 v42, 1, v42"); A("v_lshlrev_b32 v42, 5, v42")
    A("v_bfe_u32 v45, v40, 4, 5"); A("v_add_u32 v42, v42, v45")
    A("s_mul_i32 s3, s6, 96"); A("v_add_u32 v42, s3, v42"); A("v_mul_u32_u24 v42, 1792, v42"); A("v_add_u32 v41, v41, v42")
    A("s_mul_i32 s3, s5, 896"); A("v_add_u32 v41, s3, v41")
    if prio:
        A("s_cmp_ge_u32 s4, 4"); A("s_cbranch_scc0 L_prio"); A("s_setprio 1"); g.lab("L_prio")

    ACC = 48; KR = 192; QR = 144
    def mfma(d, a, b, first):
        A(f"v_mfma_f32_32x32x16_bf16 {vr(d,16)}, {vr(a,4)}, {vr(b,4)}, {'0' if first else vr(d,16)}")
    def k_read_thunks(j):
        out = []
        for u in range(4):
            def f(u=u):
                dst = vr(KR + 16*(j & 3) + 4*u, 4)
                if KG[j] == GZ: g.ds(f"ds_read_b128 {dst}, v{24+u}", f"KF{j}")
                else: g.ds(f"ds_read_b128 {dst}, v{20+u} offset:{KG[j]-GX}", f"KF{j}")
            out.append(f)
        return out
    NA = 14
    def a_read_thunks(st):
        slot = st & 3; base = 96 + 32*(st & 1); out = []
        for u in range(2):
            for e in range(2):
                out.append(lambda u=u, e=e: g.ds(f"ds_read_b64_tr_b16 {vr(base+4*u+2*e,2)}, v15 offset:{slot*16384+(16*u+4*e)*512}"))
            for t in range(3):
                out.append(lambda u=u, t=t: g.ds(f"ds_read_b128 {vr(base+8+12*u+4*t,4)}, v{16+u} offset:{slot*XS_SZ+t*2048}"))
        return out
    def a_mfma_thunks(st):
        base = 96 + 32*(st & 1)
        return [lambda u=u, t=t: mfma(ACC+16*t, base+4*u, base+8+12*u+4*t, st == 0 and u == 0) for u in range(2) for t in range(3)]
    kread = 0
    for st in range(NA):
        g.c(f"A stage {st}")
        g.vwait(f"A{st}")
        A("s_barrier")
        stamp(f"a{st}")
        oth = a_read_thunks(st)
        newread = kread
        if kread < 2 and kp[0] >= 4*(kread+1) and g.vdone(f"F{kread}"):
            oth += k_read_thunks(kread); newread = kread + 1
        if st + 3 < NA: oth += a_load_thunks(st + 3)
        lim = 4 * (2 + kread)
        nk = max(0, min(kpat[st], min(lim, 16) - kp[0]))
        if nk: oth.append(lambda nk=nk: k_issue(nk))
        interleave(g, a_mfma_thunks(st - 1) if st else [], oth, pre=(2 if st else len(oth)))
        g.lwait0()
        kread = newread
    A("s_barrier")
    assert kread == 2, kread
    interleave(g, a_mfma_thunks(NA - 1), [lambda: k_issue(20 - kp[0])], pre=0)
    A("s_mul_i32 s3, s4, 6144"); A("v_add_u32 v39, s3, v18")
    A("s_nop 13")
    for t in range(3):
        for j in range(8):
            A(f"v_cvt_pk_bf16_f32 v{ACC+16*t+j}, v{ACC+16*t+2*j}, v{ACC+16*t+2*j+1}")
        for a in range(2):
            g.ds(f"ds_write_b128 v39, {vr(ACC+16*t+4*a,4)} offset:{(a*3+t)*1024}")
    g.lwait0()
    A("s_barrier")
    stamp("A")
    def ring_off(n): return (0 if (n >> 1) & 1 else 32768) + (n & 1) * 2048
    def v_fill(n):
        A(f"s_add_u32 m0, s45, {GY + ring_off(n)}"); A(f"s_mov_b32 s53, {n*16384}")
        for i in range(2): g.vm(f"buffer_load_dwordx4 v{28+i}, s[20:23], s53 offen offset:{1024*i} nt lds", f"V{n}")
    def w_fill(u, ldsoff):
        A(f"s_add_u32 m0, s45, {ldsoff}"); A(f"s_mov_b32 s53, {u*16*896}")
        for i in range(2): g.vm(f"buffer_load_dwordx4 v{31+i}, s[24:27], s53 offen offset:{1024*i}{wflag} lds", f"W{u}")
    def q_read(c, u, t): g.ds(f"ds_read_b128 {vr(QR+(u*3+t)*4,4)}, v18 offset:{((4*c+u)*3+t)*1024}", f"Q{c}")
    def RI(j):
        g.vwait(f"F{j}")
        for f in k_read_thunks(j): f()
        g.lwait(f"KF{j}")
        if j + 3 < 8: k_issue(4)
        elif j == 5: v_fill(0); v_fill(1)
        elif j == 6: v_fill(2); v_fill(3)
    def M(j):
        c, t = j >> 1, j & 1
        g.lwait(f"Q{c}")
        for u in range(4):
            for qt in range(3):
                mfma(ACC + (t*3+qt)*16, KR + 16*(j & 3) + 4*u, QR + (u*3+qt)*4, c == 0 and u == 0)
                if t == 1 and c < 3 and u >= 1: q_read(c+1, u-1, qt)
        if t == 1 and c < 3:
            A("s_nop 1")
            for qt in range(3): q_read(c+1, 3, qt)
    MX = 42
    def maxpart(t):
        for qt in range(3):
            regs = [ACC + (t*3+qt)*16 + r for r in range(16)]
            if t == 0:
                A(f"v_max3_f32 v{MX+qt}, v{regs[0]}, v{regs[1]}, v{regs[2]}"); k = 3
            else: k = 0
            while k + 1 < 16:
                A(f"v_max3_f32 v{MX+qt}, v{MX+qt}, v{regs[k]}, v{regs[k+1]}"); k += 2
            if k < 16: A(f"v_max_f32 v{MX+qt}, v{MX+qt}, v{regs[k]}")
    for u in range(4):
        for t in range(3): q_read(0, u, t)
    RI(2); M(0); RI(3); M(1); M(2); M(3)
    for j in (4, 5, 6): RI(j); M(j)
    A("s_nop 15"); maxpart(0)
    RI(7); M(7)
    stamp("B")
    A("s_nop 15"); maxpart(1)
    for qt in range(3): A(f"v_mov_b32 v{MX+3+qt}, v{MX+qt}")
    A("s_nop 1")
    for qt in range(3): A(f"v_permlane32_swap_b32 v{MX+3+qt}, v{MX+qt}")
    A("s_nop 1")
    for qt in range(3): A(f"v_max_f32 v{MX+qt}, v{MX+qt}, v{MX+3+qt}")
    for qt in range(3): g.ds(f"ds_write_b32 v38, v{MX+qt} offset:{SCR_MAX-SCR_SUM+qt*1024}")
    g.lwait0(); A("s_barrier")
    EX = 232
    for qt in range(3):
        for k in range(2): g.ds(f"ds_read_b128 {vr(EX+qt*8+k*4,4)}, v37 offset:{SCR_MAX-SCR_SUM+qt*1024+k*16}")
    A(f"s_mov_b32 s58, 0x{LOG2E_16:x}"); A(f"s_mov_b32 s59, 0x{LOG2E_16:x}")
    A("s_mul_i32 s3, s4, 12288"); A("v_add_u32 v39, s3, v18")
    for r in range(6): A(f"v_mov_b32 v{42+r}, 0")
    g.lwait0(); A("s_barrier")
    stamp("C1")
    for qt in range(3):
        b = EX + qt*8
        A(f"v_max3_f32 v{b}, v{b}, v{b+1}, v{b+2}"); A(f"v_max3_f32 v{b}, v{b}, v{b+3}, v{b+4}"); A(f"v_max3_f32 v{b}, v{b}, v{b+5}, v{b+6}")
        A(f"v_max_f32 v{b}, v{b}, v{b+7}")
        A(f"v_mul_f32 v{b}, s58, v{b}"); A(f"v_sub_f32 v{b}, 0, v{b}"); A(f"v_mov_b32 v{b+1}, v{b}")
    for t in range(2):
        for qt in range(3):
            acc = ACC + (t*3+qt)*16; nb = EX + qt*8
            for r in range(0, 16, 2): A(f"v_pk_fma_f32 {vr(acc+r,2)}, {vr(acc+r,2)}, s[58:59], {vr(nb,2)}")
            for r in range(16): A(f"v_exp_f32 v{acc+r}, v{acc+r}")
            for r in range(0, 16, 2): A(f"v_pk_add_f32 {vr(42+2*qt,2)}, {vr(42+2*qt,2)}, {vr(acc+r,2)}")
            for j in range(8): A(f"v_cvt_pk_bf16_f32 v{acc+j}, v{acc+2*j}, v{acc+2*j+1}")
            for f in range(2): g.ds(f"ds_write_b128 v39, {vr(acc+4*f,4)} offset:{((2*t+f)*3+qt)*1024}")
    for qt in range(3): A(f"v_add_f32 v{42+2*qt}, v{42+2*qt}, v{43+2*qt}")
    for qt in range(3): A(f"v_mov_b32 v{43+2*qt}, v{42+2*qt}")
    A("s_nop 1")
    for qt in range(3): A(f"v_permlane32_swap_b32 v{43+2*qt}, v{42+2*qt}")
    A("s_nop 1")
    for qt in range(3): A(f"v_add_f32 v{42+2*qt}, v{42+2*qt}, v{43+2*qt}")
    g.lwait0()
    stamp("C")
    PB, VF, WR = 96, 144, 152
    def p_read_thunks(s):
        base = PB + 24*(s & 1); out = []
        for u in range(2):
            for qt in range(3):
                f = (2*s+u)*3 + qt
                out.append(lambda f=f, u=u, qt=qt: g.ds(f"ds_read_b128 {vr(base+(u*3+qt)*4,4)}, v{18 if f < 64 else 19} offset:{(f&63)*1024}", f"P{s}"))
        return out
    WLOC = {}
    for u in range(11): WLOC[u] = (33, (u & 1)*2048, (u & 1)*2048)
    for u, n in ((11, 12), (12, 13), (13, 14), (14, 15)): WLOC[u] = (35, ring_off(n), GY + ring_off(n))
    WLOC[15] = (33, 2048, 2048)
    def w_read(u, ct, dst):
        rb, off, _ = WLOC[u]
        for e in range(2): g.ds(f"ds_read_b64_tr_b16 {vr(dst+2*e,2)}, v{rb+ct} offset:{off+e*512}", f"WF{u}_{ct}")
    for s in range(16):
        g.c(f"D stage {s}")
        wu = s - 7
        tags = [f"V{s}"] + ([f"W{wu}"] if wu >= 0 else [])
        g.vwait(*tags)
        A("s_barrier")
        if s in (4, 8, 12): stamp(f"d{s}")
        if s == 0:
            for f in p_read_thunks(0): f()
        for u in range(2):
            for e in range(2):
                g.ds(f"ds_read_b64_tr_b16 {vr(VF+4*u+2*e,2)}, v30 offset:{ring_off(s)+(4*u+e)*4096}", f"VF{s}")
        if wu >= 0:
            for ct in range(2): w_read(wu, ct, WR + 8*wu + 4*ct)
        if s == 7:
            for qt in range(3): g.ds(f"ds_write_b32 v38, v{42+2*qt} offset:{qt*1024}", "sumw")
        if s == 9:
            for qt in range(3):
                for k in range(2): g.ds(f"ds_read_b128 {vr(EX+qt*8+k*4,4)}, v37 offset:{qt*1024+k*16}", "sumr")
        g.lwait(f"VF{s}", f"P{s}")
        base = PB + 24*(s & 1)
        mf = [lambda u=u, qt=qt: mfma(ACC+16*qt, VF+4*u, base+(u*3+qt)*4, s == 0 and u == 0) for u in range(2) for qt in range(3)]
        oth = []
        def dmas(s=s, wu=wu):
            g.lwait0()
            if s >= 5: w_fill(s - 5, WLOC[s-5][2])
            if 1 <= s <= 12: v_fill(s + 3)
            elif s >= 13: w_fill(s - 2, WLOC[s-2][2])
        oth.append(dmas)
        if s < 15: oth += p_read_thunks(s + 1)
        interleave(g, mf, oth)
        if s == 9:
            for qt in range(3):
                b = EX + qt*8
                for k in range(1, 8): A(f"v_add_f32 v{b}, v{b}, v{b+k}")
                A(f"v_rcp_f32 v{b}, v{b}"); A("s_nop 0"); A(f"v_mov_b32 v{b+1}, v{b}")
    stamp("D")
    g.vwait("W9")
    for ct in range(2): w_read(9, ct, WR + 72 + 4*ct)
    A("s_mul_i32 s3, s4, 6144"); A(f"s_add_u32 s3, s3, {O_BASE}"); A("v_add_u32 v39, s3, v18")
    A("s_nop 8")
    for qt in range(3):
        for r in range(0, 16, 2): A(f"v_pk_mul_f32 {vr(ACC+16*qt+r,2)}, {vr(ACC+16*qt+r,2)}, {vr(EX+qt*8,2)}")
        for j in range(8): A(f"v_cvt_pk_bf16_f32 v{ACC+16*qt+j}, v{ACC+16*qt+2*j}, v{ACC+16*qt+2*j+1}")
        for a in range(2): g.ds(f"ds_write_b128 v39, {vr(ACC+16*qt+4*a,4)} offset:{(a*3+qt)*1024}")
    A(f"v_add_u32 v39, {O_BASE}, v18")
    g.lwait0(); A("s_barrier")
    stamp("O")
    A("s_cmp_eq_u32 s4, 7")
    A("s_cbranch_scc1 L_pub")
    w_fill(14, WLOC[14][2]); w_fill(15, WLOC[15][2])
    A("s_mul_i32 s56, s7, 86016"); A("s_mul_i32 s3, s4, 12288"); A("s_add_u32 s56, s56, s3")
    OB, NOB = 232, 6
    seq = [(0, u, qt) for u in range(16) for qt in range(3)] + [(1, u, qt) for qt in range(3) for u in range(16)]
    def wreg(u, ct):
        if u < 10: return WR + 8*u + 4*ct
        if ct == 0: return VF + 4*(u & 1)
        return WR + 8*(u - 10)
    def o_read(i):
        ct, u, qt = seq[i]
        g.ds(f"ds_read_b128 {vr(OB+4*(i % NOB),4)}, v39 offset:{(u*3+qt)*1024}", f"O{i}")
    def store_thunks(ct, qt):
        acc = ACC + (ct*3+qt)*16; out = []
        for j in range(8): out.append(lambda j=j: A(f"v_cvt_pk_bf16_f32 v{acc+j}, v{acc+2*j}, v{acc+2*j+1}"))
        for a in range(2):
            k = (ct*3+qt)*2 + a
            def st(a=a, k=k):
                A(f"s_add_u32 s57, s56, {(k >> 2)*4096}")
                g.vm(f"buffer_store_dwordx4 {vr(acc+4*a,4)}, v18, s[28:31], s57 offen offset:{(k & 3)*1024}{sflag}", "ST")
            out.append(st)
        return out
    AHEAD = 4
    for i in range(AHEAD): o_read(i)
    pend = []
    for i, (ct, u, qt) in enumerate(seq):
        if ct == 0 and qt == 0 and u + 1 >= 10 and u + 1 < 16:
            pass
        tags = [f"O{i}"]
        if u >= 10: tags.append(f"WF{u}_{ct}")
        g.lwait(*tags)
        mfma(ACC + (ct*3+qt)*16, wreg(u, ct), OB + 4*(i % NOB), u == 0)
        if i + AHEAD < len(seq): o_read(i + AHEAD)
        if ct == 0 and qt == 0 and 10 <= u + 1 < 16:
            g.vwait(f"W{u+1}"); w_read(u + 1, 0, wreg(u + 1, 0))
        if ct == 0 and qt == 1 and u >= 10:
            w_read(u, 1, wreg(u, 1))
        if i == 47 + 4:
            for q in range(3): pend += store_thunks(0, q)
        if ct == 1 and qt >= 1 and u == 3: pend += store_thunks(1, qt - 1)
        for _ in range(3):
            if pend: pend.pop(0)()
    stamp("E")
    while pend: pend.pop(0)()
    A("s_nop 15")
    for f in store_thunks(1, 2): f()
    A("s_waitcnt vmcnt(0)")
    g.vq = []
    g.lab("L_pub")
    A("s_barrier")
    stamp("P")
    A("s_cmp_lg_u32 s4, 0")
    A("s_cbranch_scc1 L_wait_done")
    A("s_lshl_b32 s3, s54, 4"); A("v_mov_b32 v42, s3"); A("v_mov_b32 v43, 1")
    A("s_mov_b64 exec, 1")
    A("global_atomic_add v42, v43, s[62:63]")
    A("s_mov_b32 s57, 0")
    g.lab("L_poll")
    A("global_load_dword v44, v42, s[62:63] sc1")
    A("s_waitcnt vmcnt(0)")
    A("v_readfirstlane_b32 s3, v44")
    A("s_add_u32 s57, s57, 1")
    A("s_cmp_ge_u32 s3, 16")
    A("s_cbranch_scc1 L_poll_done")
    A("s_sleep 1")
    A("s_cmp_lt_u32 s57, 0x20000")
    A("s_cbranch_scc1 L_poll")
    g.lab("L_poll_done")
    A("s_mov_b64 exec, -1")
    g.lab("L_wait_done")
    A("s_barrier")
    stamp("W")
    A("s_cmp_ge_u32 s4, 6")
    A("s_cbranch_scc1 L_fin")
    A("v_cmp_gt_u32 vcc, 336, v0")
    A("s_and_saveexec_b64 s[56:57], vcc")
    for h in range(16):
        A(f"s_mov_b32 s53, {h*86016}")
        A(f"buffer_load_dwordx4 {vr(48+4*h,4)}, v40, s[28:31], s53 offen sc1")
    A("s_mov_b32 s16, s60"); A("s_mov_b32 s17, s61"); A(f"s_mov_b32 s18, {8*96*896*2}")
    A("s_mov_b32 s58, 0xffff0000")
    for h in range(16):
        A(f"s_waitcnt vmcnt({15-h})")
        for j in range(4):
            s = 48 + 4*h + j
            if h == 0:
                A(f"v_lshlrev_b32 v{120+2*j}, 16, v{s}"); A(f"v_and_b32 v{121+2*j}, s58, v{s}")
            else:
                t = 128 + 2*j
                A(f"v_lshlrev_b32 v{t}, 16, v{s}"); A(f"v_and_b32 v{t+1}, s58, v{s}")
                A(f"v_pk_add_f32 {vr(120+2*j,2)}, {vr(120+2*j,2)}, {vr(t,2)}")
    for j in range(4): A(f"v_cvt_pk_bf16_f32 v{136+j}, v{120+2*j}, v{121+2*j}")
    A("buffer_store_dwordx4 v[136:139], v41, s[16:19], 0 offen")
    A("s_mov_b64 exec, -1")
    g.lab("L_fin")
    if stamps:
        A("s_waitcnt vmcnt(0)")
        stamp("end")
        A("s_waitcnt lgkmcnt(0)")
        A(f"s_cmp_lg_u32 s4, {swave}")
        A("s_cbranch_scc1 L_end")
        A("s_add_u32 s42, s42, 0x8000000"); A("s_addc_u32 s43, s43, 0")
        A(f"s_mul_i32 s3, s2, {8*nst[0]}")
        A("v_mov_b32 v10, s3")
        for j in range(nst[0]):
            A(f"v_mov_b32 v12, s{64+2*j}"); A(f"v_mov_b32 v13, s{65+2*j}")
            A(f"global_store_dwordx2 v10, v[12:13], s[42:43] offset:{j*8}")
            A("s_nop 1")
    g.lab("L_end")
    A("s_endpgm")
    g.lab("L_code_end")
    g.L.append(f'''.section .rodata,"a"
.p2align 6
.amdhsa_kernel {KN}
  .amdhsa_next_free_vgpr 256
  .amdhsa_next_free_sgpr 102
  .amdhsa_accum_offset 256
  .amdhsa_group_segment_fixed_size 0
  .amdhsa_kernarg_size 104
  .amdhsa_user_sgpr_count 2
  .amdhsa_user_sgpr_kernarg_segment_ptr 1
  .amdhsa_system_sgpr_workgroup_id_x 1
.end_amdhsa_kernel''')
    return finalize("\n".join(g.L) + "\n"), nst[0]

def finalize(s):
    t = s.replace("CODE_BYTES", "0x1000")
    with tempfile.TemporaryDirectory() as d:
        open(d + "/t.s", "w").write(t)
        subprocess.check_call(["clang", "-x", "assembler", "-target", "amdgcn-amd-amdhsa", "-mcpu=gfx950", "-c", d + "/t.s", "-o", d + "/t.o"])
        o = subprocess.check_output(["llvm-objdump", "-t", d + "/t.o"]).decode()
    sym = {l.split()[-1]: int(l.split()[0], 16) for l in o.splitlines() if re.match(r"^[0-9a-f]{16} ", l)}
    n = sym["L_code_end"] - sym["L_code_start"] - 128
    assert 0x100 < n < 32768
    return s.replace("CODE_BYTES", hex(n))

ALLST = ("start", "a0", "a4", "a9", "A", "B", "C1", "C", "d4", "d8", "d12", "D", "O", "E", "P", "W", "end")
if __name__ == "__main__":
    s, n = gen(); open("k2.s", "w").write(s)
    s, n = gen(stamps=ALLST); open("k2_st.s", "w").write(s)
    s, n = gen(stamps=ALLST, swave=4); open("k2_st4.s", "w").write(s)
    print("stamps", n, ALLST)
```

```python
from gen2 import *
import sys
V = {
 "v_nt": dict(wflag=" nt"),
 "v_klate": dict(kinit=0, kpat=[0]*4+[4,4]+[0]*4+[2,2,2,2]),
 "v_klate_nt": dict(wflag=" nt", kinit=0, kpat=[0]*4+[4,4]+[0]*4+[2,2,2,2]),
 "v_sc1": dict(wflag=" sc1"),
}
for k, kw in V.items():
    s, n = gen(stamps=ALLST, **kw); open(k + ".s", "w").write(s)
```

```python
import sys, re, subprocess, tempfile, copy
NAME = "concat_heads__mha_block_cached__mha_block_cached__near_ridge"
KN = NAME + "_kernel"
K1 = 1024
GX, GY, GZ = 64*K1, 96*K1, 128*K1
XS_BASE, XS_SZ = 64*K1, 6144
SCR_SUM, SCR_MAX = 48*K1, 48*K1
O_BASE = 48*K1
FLAG_OFF = 24 << 20
LOG2E_16 = 0x3DB8AA3B
ACC, KR, QR = 48, 192, 144

def vr(a, n): return f"v[{a}:{a+n-1}]"

class Gen:
    def __init__(self):
        self.L = []; self.vq = []; self.lq = []
    def A(self, s): self.L.append("    " + s)
    def lab(self, s): self.L.append(s + ":")
    def c(self, s): self.L.append("    ; " + s)
    def vm(self, s, tag): self.A(s); self.vq.append(tag)
    def vwait(self, *tags):
        idx = max([i for i, t in enumerate(self.vq) if t in tags], default=-1)
        if idx < 0: return
        n = len(self.vq) - 1 - idx
        self.vq = self.vq[idx+1:]
        self.A(f"s_waitcnt vmcnt({min(n,62)})")
    def ds(self, s, tag=None): self.A(s); self.lq.append(tag)
    def lwait(self, *tags):
        idx = max([i for i, t in enumerate(self.lq) if t in tags], default=-1)
        if idx < 0: return
        n = len(self.lq) - 1 - idx
        self.lq = self.lq[idx+1:]
        self.A(f"s_waitcnt lgkmcnt({min(n,14)})")
    def lwait0(self):
        self.lq = []; self.A("s_waitcnt lgkmcnt(0)")

def interleave(mf, oth, pre=0):
    for f in oth[:pre]: f()
    oth = oth[pre:]
    n = len(mf); k = 0
    for i, m in enumerate(mf):
        m()
        upto = (len(oth) * (i + 1) + n - 1) // n
        while k < upto: oth[k](); k += 1
    while k < len(oth): oth[k](); k += 1

def gen(stamps=(), swave=0, wflag="", kpat=None, sflag=" sc1", touch=0, sleep=2, classes=True, wotouch=False, clsbit=5, rot=True, tlb=True):
    g = Gen(); A = g.A
    if kpat is None: kpat = [0]*11 + [2, 3, 3]
    hdr = open("cdna_kernels/" + NAME + ".s.ref").read().split("\n")
    g.L += [l for l in hdr if l.startswith(";") and "@launch" not in l]
    g.L.append("; @launch grid=(256,1,1) block=(512,1,1) lds=163840")
    g.L.append('.amdgcn_target "amdgcn-amd-amdhsa--gfx950"\n.text')
    g.L.append(f".globl {KN}\n.p2align 8\n.type {KN},@function")
    g.lab(KN); g.lab("L_code_start")
    def stamp(name):
        if name in stamps:
            i = stamps.index(name)
            A(f"s_memrealtime s[{64+2*i}:{65+2*i}]")
    A("s_cmp_ge_u32 s2, 256")
    A("s_cbranch_scc1 L_end")
    stamp("start")
    A("s_lshr_b32 s5, s2, 2"); A("s_and_b32 s5, s5, 1")
    A("s_mul_i32 s3, s5, 40")
    A("s_add_u32 s48, s0, s3"); A("s_addc_u32 s49, s1, 0")
    A("s_load_dwordx8 s[32:39], s[48:49], 0")
    A("s_load_dwordx2 s[40:41], s[48:49], 32")
    A("s_load_dwordx4 s[60:63], s[0:1], 80")
    A("s_load_dwordx2 s[42:43], s[0:1], 96")
    A("s_getpc_b64 s[50:51]")
    A("v_lshlrev_b32 v1, 6, v0")
    A("v_min_u32 v1, CODE_BYTES, v1")
    A("global_load_dword v191, v1, s[50:51]")
    A("v_lshrrev_b32 v1, 6, v0")
    A("v_and_b32 v2, 63, v0")
    A("v_readfirstlane_b32 s4, v1")
    A("s_and_b32 s7, s2, 3"); A("s_lshr_b32 s3, s2, 3"); A("s_and_b32 s3, s3, 3")
    A("s_lshl_b32 s3, s3, 2"); A("s_add_u32 s7, s7, s3")
    A("s_lshr_b32 s6, s2, 5")
    A("v_lshrrev_b32 v3, 5, v2"); A("v_and_b32 v4, 31, v2"); A("v_lshrrev_b32 v5, 4, v2")
    for i in range(2):
        d = 28 + i
        A(f"v_add_u32 v{d}, {2*i}, v3"); A(f"v_lshlrev_b32 v{d}, 2, v{d}"); A(f"v_xor_b32 v{d}, v{d}, v4"); A(f"v_lshlrev_b32 v{d}, 4, v{d}")
    A("v_lshl_add_u32 v6, v1, 2, v3")
    A("v_lshl_add_u32 v12, v6, 13, v28")
    A("v_lshl_add_u32 v13, v6, 13, v29"); A(f"v_add_u32 v13, {16384-1024}, v13")
    A("v_lshl_add_u32 v28, v6, 9, v28"); A("v_lshl_add_u32 v29, v6, 9, v29")
    A("v_mul_u32_u24 v7, 3, v1"); A("v_add_u32 v14, v7, v5"); A("v_xor_b32 v14, v14, v2"); A("v_and_b32 v14, 3, v14"); A("v_lshlrev_b32 v14, 4, v14")
    A("v_lshrrev_b32 v6, 2, v2"); A("v_lshl_add_u32 v6, v7, 2, v6"); A("v_mul_u32_u24 v6, 896, v6"); A("v_add_u32 v14, v14, v6")
    A("s_lshl_b32 s47, s4, 11")
    A(f"s_mul_i32 s52, s4, 768"); A(f"s_add_u32 s52, s52, {XS_BASE}")
    A("s_lshl_b32 s45, s4, 12")
    A("s_lshl_b32 s55, s4, 15")
    A("s_mov_b32 s10, 86016"); A("s_mov_b32 s11, 0x20000"); A(f"s_mov_b32 s14, {447*8192+512}"); A("s_mov_b32 s15, 0x20000")
    A("s_mov_b32 s18, 262144"); A("s_mov_b32 s19, 0x20000")
    A("s_mul_i32 s56, s6, 86016"); A("s_lshl_b32 s57, s7, 9")
    A("s_lshl_b32 s44, s6, 4"); A("s_add_u32 s44, s44, s7"); A("s_lshl_b32 s46, s44, 18")
    A("v_lshrrev_b32 v6, 3, v2"); A("v_and_b32 v7, 7, v2")
    for i in range(4):
        d = 8 + i
        if i & 1: A(f"v_xor_b32 v{d}, 4, v5"); A(f"v_xor_b32 v{d}, v{d}, v7")
        else: A(f"v_xor_b32 v{d}, v5, v7")
        A(f"v_lshlrev_b32 v{d}, 4, v{d}")
        A(f"v_lshl_add_u32 v{d}, v6, 9, v{d}")
        if i: A(f"v_add_u32 v{d}, {i*(4096-1024)}, v{d}")
    A("s_waitcnt lgkmcnt(0)")
    A("s_add_u32 s8, s32, s56"); A("s_addc_u32 s9, s33, 0")
    A("s_add_u32 s12, s38, s57"); A("s_addc_u32 s13, s39, 0")
    A("s_add_u32 s16, s34, s46"); A("s_addc_u32 s17, s35, 0")
    if rot:
        if classes:
            A("s_lshr_b32 s38, s6, 1"); A("s_lshr_b32 s3, s7, 2"); A("s_add_u32 s38, s38, s3"); A("s_and_b32 s38, s38, 3")
            A("s_mul_i32 s38, s38, 7"); A("s_lshr_b32 s38, s38, 1")
        else:
            A("s_lshr_b32 s3, s7, 2"); A("s_lshl_b32 s3, s3, 1"); A("s_add_u32 s38, s6, s3"); A("s_and_b32 s38, s38, 7")
            A("s_mul_i32 s38, s38, 7"); A("s_lshr_b32 s38, s38, 2")
        A("s_lshl_b32 s39, s6, 1")
    else:
        A("s_mov_b32 s38, 0"); A("s_mov_b32 s39, 0")

    def a_load_thunks(st):
        slot = st & 3
        def x():
            A(f"s_add_u32 m0, s52, {slot*XS_SZ}"); A("s_lshl_b32 s53, s38, 6")
            A("s_mov_b32 exec_hi, 0xffff")
            g.vm(f"buffer_load_dwordx4 v14, s[8:11], s53 offen{wflag} lds", f"A{st}")
            A("s_mov_b32 exec_hi, -1")
        def w0():
            A(f"s_add_u32 m0, s47, {slot*16384}"); A("s_lshl_b32 s53, s38, 18")
            g.vm(f"buffer_load_dwordx4 v12, s[12:15], s53 offen{wflag} lds", f"A{st}")
        def w1():
            g.vm(f"buffer_load_dwordx4 v13, s[12:15], s53 offen offset:1024{wflag} lds", f"A{st}")
            A("s_add_u32 s38, s38, 1"); A("s_cmp_eq_u32 s38, 14"); A("s_cselect_b32 s38, 0, s38")
        return [x, w0, w1]
    st8 = {"kp": 0, "KG": None}
    def k_issue(n):
        while n > 0:
            j = st8["kp"] >> 2; c, t = j >> 1, j & 1
            A(f"s_add_u32 m0, s45, {st8['KG'][j]}"); A(f"s_add_u32 s53, s55, {t*16384 + c*128}")
            while n > 0:
                i = st8["kp"] & 3
                g.vm(f"buffer_load_dwordx4 v{8+i}, s[16:19], s53 offen offset:{1024*i} nt lds", f"F{j}")
                st8["kp"] += 1; n -= 1
                if st8["kp"] & 3 == 0: break
    KG1 = [GZ, GY, GZ, GY, GX, GZ, GY, GX]
    KG2 = [GX, GZ, GY, GZ, GY, GZ, GX, GY]
    if classes:
        A(f"s_bitcmp1_b32 s2, {clsbit}"); A("s_cbranch_scc1 L_first2")
    for st in range(3):
        for f in a_load_thunks(st): f()
    vq1 = list(g.vq)
    nshare = 4 if classes else 8
    rows = 448 // nshare
    if touch:
        A("v_lshrrev_b32 v44, 2, v0"); A(f"v_min_u32 v44, {rows-1}, v44")
        if classes: A("s_lshr_b32 s3, s6, 1"); A(f"s_mul_i32 s3, s3, {rows}")
        else: A(f"s_mul_i32 s3, s6, {rows}")
        A("v_add_u32 v44, s3, v44")
        A("v_lshlrev_b32 v44, 13, v44"); A("v_and_b32 v43, 3, v0"); A("v_lshl_add_u32 v44, v43, 7, v44")
        g.vm("buffer_load_dword v190, v44, s[12:15], 0 offen", "T")
        A("v_and_b32 v43, 255, v0"); A("v_min_u32 v43, 167, v43"); A("s_lshr_b32 s3, s7, 2"); A("s_mul_i32 s3, s3, 168")
        A("v_add_u32 v43, s3, v43"); A("v_lshlrev_b32 v43, 7, v43")
        if classes:
            A("v_lshrrev_b32 v42, 8, v0"); A("v_mul_u32_u24 v42, 86016, v42"); A("v_add_u32 v43, v43, v42")
            A("s_mov_b32 s10, 172032")
        g.vm("buffer_load_dword v189, v43, s[8:11], 0 offen", "T")
        if classes: A("s_mov_b32 s10, 86016")
    vq1 = list(g.vq)
    if classes:
        A("s_branch L_first_done")
        g.lab("L_first2")
        g.vq = []; st8["KG"] = KG2; st8["kp"] = 0
        k_issue(12)
        vq2 = list(g.vq)
        g.lab("L_first_done")
    A("s_add_u32 s20, s36, s46"); A("s_addc_u32 s21, s37, 0"); A("s_mov_b32 s22, 262144"); A("s_mov_b32 s23, 0x20000")
    A("s_mul_i32 s3, s7, 229376"); A("s_add_u32 s24, s40, s3"); A("s_addc_u32 s25, s41, 0"); A("s_mov_b32 s26, 229376"); A("s_mov_b32 s27, 0x20000")
    A("s_lshl_b32 s54, s5, 3"); A("s_add_u32 s54, s54, s6")
    A(f"s_mul_i32 s3, s54, {16*86016}")
    A("s_add_u32 s28, s42, s3"); A("s_addc_u32 s29, s43, 0"); A(f"s_mov_b32 s30, {16*86016}"); A("s_mov_b32 s31, 0x20000")
    A(f"s_lshl_b32 s3, s54, 12"); A(f"s_add_u32 s3, s3, {FLAG_OFF}")
    A("s_add_u32 s32, s42, s3"); A("s_addc_u32 s33, s43, 0")
    A("s_cmp_lg_u32 s4, 7"); A("s_cbranch_scc1 L_noclear")
    A("s_lshl_b32 s3, s7, 2"); A("v_mov_b32 v44, s3"); A("v_mov_b32 v45, 0")
    A("s_mov_b64 exec, 1")
    A("global_atomic_swap v188, v44, v45, s[32:33] sc0")
    if tlb:
        A("buffer_load_dword v187, v45, s[16:19], 0 offen nt")
        A("buffer_load_dword v186, v45, s[20:23], 0 offen nt")
        A("buffer_load_dword v185, v45, s[24:27], 0 offen nt")
        A("s_mov_b32 s3, 229372")
        A("buffer_load_dword v184, v45, s[24:27], s3 offen nt")
        A("buffer_load_dword v183, v45, s[12:15], 0 offen nt")
        A("buffer_load_dword v182, v45, s[8:11], 0 offen nt")
        A("global_load_dword v181, v45, s[62:63] sc1")
        A("s_mul_i32 s3, s7, 86016")
        A("buffer_load_dword v180, v45, s[28:31], s3 offen sc1")
    A("s_mov_b64 exec, -1")
    g.lab("L_noclear")
    A("v_and_b32 v42, 1, v2"); A("v_lshlrev_b32 v42, 4, v42")
    A("v_and_b32 v43, 2, v2"); A("v_lshlrev_b32 v43, 2, v43"); A("v_or_b32 v42, v42, v43")
    A("v_and_b32 v43, 16, v2"); A("v_lshlrev_b32 v43, 1, v43"); A("v_or_b32 v42, v42, v43")
    A("v_lshrrev_b32 v43, 2, v2"); A("v_and_b32 v43, 3, v43")
    A("v_lshl_add_u32 v44, v1, 6, v42")
    A("v_lshlrev_b32 v45, 6, v43"); A("v_xor_b32 v44, v44, v45")
    A("v_lshl_add_u32 v44, v43, 9, v44")
    A("v_lshl_add_u32 v15, v3, 12, v44")
    A("v_lshl_add_u32 v30, v3, 13, v44"); A(f"v_add_u32 v30, {GY}, v30")
    A("v_lshrrev_b32 v16, 2, v4"); A("v_and_b32 v16, 3, v16"); A("v_xor_b32 v16, v16, v3"); A("v_lshlrev_b32 v16, 4, v16")
    A("v_lshl_add_u32 v16, v4, 6, v16"); A(f"v_add_u32 v16, {XS_BASE}, v16"); A("v_xor_b32 v17, 32, v16")
    A("v_lshlrev_b32 v18, 4, v2"); A("v_add_u32 v19, 0x10000, v18")
    A("v_and_b32 v44, 0x13, v4"); A("v_and_b32 v20, 4, v4"); A("v_lshlrev_b32 v20, 1, v20"); A("v_or_b32 v44, v44, v20")
    A("v_and_b32 v20, 8, v4"); A("v_lshrrev_b32 v20, 1, v20"); A("v_or_b32 v44, v44, v20")
    A("v_lshrrev_b32 v20, 1, v44"); A("v_and_b32 v20, 7, v20"); A("v_xor_b32 v20, v20, v3"); A("v_lshlrev_b32 v20, 4, v20")
    A("v_lshl_add_u32 v20, v44, 7, v20"); A("v_lshl_add_u32 v20, v1, 12, v20"); A(f"v_add_u32 v20, {GX}, v20")
    for u in range(1, 4): A(f"v_xor_b32 v{20+u}, {u<<5}, v20")
    for u in range(4): A(f"v_add_u32 v{24+u}, {GZ-GX}, v{20+u}")
    A("v_and_b32 v31, 1, v5"); A("v_lshlrev_b32 v31, 2, v31"); A("v_xor_b32 v31, v31, v7"); A("v_lshlrev_b32 v31, 4, v31")
    A("v_mul_u32_u24 v32, 896, v6"); A("v_add_u32 v31, v31, v32"); A("v_lshl_add_u32 v31, v1, 7, v31")
    A(f"v_add_u32 v32, {8*896-1024}, v31")
    A("v_lshrrev_b32 v33, 1, v43"); A("v_lshlrev_b32 v33, 6, v33"); A("v_xor_b32 v33, v33, v42")
    A("v_lshl_add_u32 v33, v43, 7, v33"); A("v_lshl_add_u32 v33, v3, 10, v33")
    A("v_lshl_add_u32 v35, v1, 12, v33"); A(f"v_add_u32 v35, {GY}, v35"); A("v_xor_b32 v36, 64, v35")
    A("v_lshl_add_u32 v33, v1, 11, v33"); A("v_xor_b32 v34, 64, v33")
    A("v_lshlrev_b32 v37, 5, v4"); A(f"v_add_u32 v37, {SCR_SUM}, v37"); A("v_lshl_add_u32 v38, v1, 2, v37")
    A("s_mul_i32 s3, s7, 5376"); A("v_lshlrev_b32 v40, 4, v0"); A("v_add_u32 v40, s3, v40")
    A("v_lshrrev_b32 v42, 10, v40")
    A("v_mul_u32_u24 v43, 43, v42"); A("v_lshrrev_b32 v43, 9, v43")
    A("v_mul_u32_u24 v44, 12, v43"); A("v_sub_u32 v42, v42, v44")
    A("v_mul_u32_u24 v44, 43, v42"); A("v_lshrrev_b32 v44, 8, v44")
    A("v_mul_u32_u24 v45, 6, v44"); A("v_sub_u32 v42, v42, v45")
    A("v_lshlrev_b32 v41, 7, v43"); A("v_lshl_add_u32 v41, v44, 6, v41")
    A("v_and_b32 v45, 1, v42"); A("v_lshl_add_u32 v41, v45, 5, v41")
    A("v_bfe_u32 v45, v40, 9, 1"); A("v_lshl_add_u32 v41, v45, 4, v41")
    A("v_lshrrev_b32 v42, 1, v42"); A("v_lshlrev_b32 v42, 5, v42")
    A("v_bfe_u32 v45, v40, 4, 5"); A("v_add_u32 v42, v42, v45")
    A("s_mul_i32 s3, s6, 96"); A("v_add_u32 v42, s3, v42"); A("v_mul_u32_u24 v42, 1792, v42"); A("v_add_u32 v41, v41, v42")
    A("s_mul_i32 s3, s5, 896"); A("v_add_u32 v41, s3, v41")
    A("v_min_u32 v42, 223, v0"); A("s_mul_i32 s3, s6, 224"); A("v_add_u32 v42, s3, v42"); A("v_lshlrev_b32 v42, 7, v42")

    def mfma(d, a, b, first):
        A(f"v_mfma_f32_32x32x16_bf16 {vr(d,16)}, {vr(a,4)}, {vr(b,4)}, {'0' if first else vr(d,16)}")
    def k_read(j):
        KG = st8["KG"]
        for u in range(4):
            dst = vr(KR + 16*(j & 3) + 4*u, 4)
            if KG[j] == GZ: g.ds(f"ds_read_b128 {dst}, v{24+u}", f"KF{j}")
            else: g.ds(f"ds_read_b128 {dst}, v{20+u} offset:{KG[j]-GX}", f"KF{j}")
    def WR_(j):
        g.vwait(f"F{j}"); k_read(j); g.lwait(f"KF{j}")
    NA = 14
    def a_read_thunks(st):
        slot = st & 3; base = 96 + 32*(st & 1); out = []
        for u in range(2):
            for e in range(2):
                out.append(lambda u=u, e=e: g.ds(f"ds_read_b64_tr_b16 {vr(base+4*u+2*e,2)}, v15 offset:{slot*16384+(16*u+4*e)*512}"))
            for t in range(3):
                out.append(lambda u=u, t=t: g.ds(f"ds_read_b128 {vr(base+8+12*u+4*t,4)}, v{16+u} offset:{slot*XS_SZ+t*2048}"))
        return out
    def a_mfma_thunks(st):
        base = 96 + 32*(st & 1)
        return [lambda u=u, t=t: mfma(ACC+16*t, base+4*u, base+8+12*u+4*t, st == 0 and u == 0) for u in range(2) for t in range(3)]
    def ring_off(n): return (0 if (n >> 1) & 1 else 32768) + (n & 1) * 2048
    def v_fill(n):
        A(f"s_add_u32 m0, s45, {GY + ring_off(n)}"); A(f"s_mov_b32 s53, {n*16384}")
        for i in range(2): g.vm(f"buffer_load_dwordx4 v{28+i}, s[20:23], s53 offen offset:{1024*i} nt lds", f"V{n}")
    def q_read(c, u, t): g.ds(f"ds_read_b128 {vr(QR+(u*3+t)*4,4)}, v18 offset:{((4*c+u)*3+t)*1024}", f"Q{c}")
    def M(j):
        c, t = j >> 1, j & 1
        g.lwait(f"Q{c}")
        for u in range(4):
            for qt in range(3):
                mfma(ACC + (t*3+qt)*16, KR + 16*(j & 3) + 4*u, QR + (u*3+qt)*4, c == 0 and u == 0)
                if t == 1 and c < 3 and u >= 1: q_read(c+1, u-1, qt)
        if t == 1 and c < 3:
            A("s_nop 1")
            for qt in range(3): q_read(c+1, 3, qt)
    MX = 12
    def maxpart(t):
        for qt in range(3):
            regs = [ACC + (t*3+qt)*16 + r for r in range(16)]
            if t == 0:
                A(f"v_max3_f32 v{MX+qt}, v{regs[0]}, v{regs[1]}, v{regs[2]}"); k = 3
            else: k = 0
            while k + 1 < 16:
                A(f"v_max3_f32 v{MX+qt}, v{MX+qt}, v{regs[k]}, v{regs[k+1]}"); k += 2
            if k < 16: A(f"v_max_f32 v{MX+qt}, v{MX+qt}, v{regs[k]}")
    def w7_clear(cls):
        A("s_cmp_lg_u32 s4, 7"); A(f"s_cbranch_scc1 L_noclear{cls}")
        A("s_lshl_b32 s3, s7, 2"); A("v_mov_b32 v44, s3"); A("v_mov_b32 v45, 0")
        A("s_mov_b64 exec, 1")
        A("global_atomic_swap v46, v44, v45, s[32:33] sc0")
        A("s_mov_b64 exec, -1")
        g.lab(f"L_noclear{cls}")
    def w7_count(cls):
        A("s_cmp_lg_u32 s4, 7"); A(f"s_cbranch_scc1 L_nocnt{cls}")
        A("s_lshl_b32 s3, s54, 4"); A("v_mov_b32 v44, s3"); A("v_mov_b32 v45, 1")
        A("s_mov_b64 exec, 1")
        A("global_atomic_add v44, v45, s[62:63]")
        A("s_mov_b64 exec, -1")
        g.lab(f"L_nocnt{cls}")
    def phaseAB(cls):
        if cls == 2:
            WR_(0); WR_(1); k_issue(4); WR_(2); k_issue(4)
            A("s_barrier")
            WR_(3); k_issue(4)
            for st in range(3):
                for f in a_load_thunks(st): f()
        for st in range(NA):
            g.c(f"A stage {st} class {cls}")
            g.vwait(f"A{st}")
            A("s_barrier")
            stamp(f"a{st}")
            oth = a_read_thunks(st)
            if st + 3 < NA: oth += a_load_thunks(st + 3)
            if cls == 1 and kpat[st]: oth.append(lambda nk=kpat[st]: k_issue(nk))
            interleave(a_mfma_thunks(st - 1) if st else [], oth, pre=(2 if st else len(oth)))
            g.lwait0()
        A("s_barrier")
        tgt = 8 if cls == 1 else 28
        interleave(a_mfma_thunks(NA - 1), [lambda: k_issue(tgt - st8["kp"])], pre=0)
        A("s_mul_i32 s3, s4, 6144"); A("v_add_u32 v39, s3, v18")
        A("s_nop 9")
        for t in range(3):
            for j in range(8): A(f"v_cvt_pk_bf16_f32 v{ACC+16*t+j}, v{ACC+16*t+2*j}, v{ACC+16*t+2*j+1}")
            for a in range(2): g.ds(f"ds_write_b128 v39, {vr(ACC+16*t+4*a,4)} offset:{(a*3+t)*1024}")
        g.lwait0()
        A("s_barrier")
        stamp("A")
        for u in range(4):
            for t in range(3): q_read(0, u, t)
        def wot():
            if wotouch:
                A("s_cmp_ge_u32 s4, 4"); A(f"s_cbranch_scc1 L_nowot{cls}")
                A("buffer_load_dword v43, v42, s[24:27], 0 offen")
                g.lab(f"L_nowot{cls}")
        if cls == 1:
            WR_(0); k_issue(4); M(0); WR_(1); k_issue(8); M(1)
            for j in (2, 3, 4): WR_(j); k_issue(4); M(j)
            wot()
            WR_(5); v_fill(0); v_fill(1); M(5)
            WR_(6); v_fill(2); v_fill(3); M(6)
            w7_count(cls)
            A("s_nop 10"); maxpart(0)
            WR_(7); M(7)
        else:
            M(0); WR_(4); k_issue(4); wot(); M(1); WR_(5); v_fill(0); v_fill(1)
            M(2); M(3); M(4); M(5)
            WR_(6); M(6)
            w7_count(cls)
            A("s_nop 10"); maxpart(0)
            WR_(7); v_fill(2); v_fill(3); M(7)
        stamp("B")
    if classes:
        A(f"s_bitcmp1_b32 s2, {clsbit}"); A("s_cbranch_scc1 L_cls2")
    g.vq = vq1; st8["KG"] = KG1; st8["kp"] = 0
    phaseAB(1)
    vq_end = list(g.vq)
    if classes:
        A("s_branch L_join")
        g.lab("L_cls2")
        g.vq = vq2; st8["KG"] = KG2; st8["kp"] = 12; g.lq = []
        phaseAB(2)
        assert g.vq == vq_end, (g.vq, vq_end)
        g.lab("L_join")
    EX = 232; SM = 20; RC = 8
    A("s_nop 15"); maxpart(1)
    for qt in range(3): A(f"v_mov_b32 v{MX+3+qt}, v{MX+qt}")
    A("s_nop 1")
    for qt in range(3): A(f"v_permlane32_swap_b32 v{MX+3+qt}, v{MX+qt}")
    A("s_nop 1")
    for qt in range(3): A(f"v_max_f32 v{MX+qt}, v{MX+qt}, v{MX+3+qt}")
    for qt in range(3): g.ds(f"ds_write_b32 v38, v{MX+qt} offset:{qt*1024}")
    g.lwait0(); A("s_barrier")
    for qt in range(3):
        for k in range(2): g.ds(f"ds_read_b128 {vr(EX+qt*8+k*4,4)}, v37 offset:{qt*1024+k*16}")
    A(f"s_mov_b32 s58, 0x{LOG2E_16:x}"); A(f"s_mov_b32 s59, 0x{LOG2E_16:x}")
    A("s_mul_i32 s3, s4, 12288"); A("v_add_u32 v39, s3, v18")
    for r in range(6): A(f"v_mov_b32 v{SM+r}, 0")
    g.lwait0(); A("s_barrier")
    stamp("C1")
    for qt in range(3):
        b = EX + qt*8
        A(f"v_max3_f32 v{b}, v{b}, v{b+1}, v{b+2}"); A(f"v_max3_f32 v{b}, v{b}, v{b+3}, v{b+4}"); A(f"v_max3_f32 v{b}, v{b}, v{b+5}, v{b+6}")
        A(f"v_max_f32 v{b}, v{b}, v{b+7}")
        A(f"v_mul_f32 v{b}, s58, v{b}"); A(f"v_sub_f32 v{b}, 0, v{b}"); A(f"v_mov_b32 v{b+1}, v{b}")
    for t in range(2):
        for qt in range(3):
            acc = ACC + (t*3+qt)*16; nb = EX + qt*8
            for r in range(0, 16, 2): A(f"v_pk_fma_f32 {vr(acc+r,2)}, {vr(acc+r,2)}, s[58:59], {vr(nb,2)}")
            for r in range(16): A(f"v_exp_f32 v{acc+r}, v{acc+r}")
            for r in range(0, 16, 2): A(f"v_pk_add_f32 {vr(SM+2*qt,2)}, {vr(SM+2*qt,2)}, {vr(acc+r,2)}")
            for j in range(8): A(f"v_cvt_pk_bf16_f32 v{acc+j}, v{acc+2*j}, v{acc+2*j+1}")
            for f in range(2): g.ds(f"ds_write_b128 v39, {vr(acc+4*f,4)} offset:{((2*t+f)*3+qt)*1024}")
    for qt in range(3): A(f"v_add_f32 v{SM+2*qt}, v{SM+2*qt}, v{SM+1+2*qt}")
    for qt in range(3): A(f"v_mov_b32 v{SM+1+2*qt}, v{SM+2*qt}")
    A("s_nop 1")
    for qt in range(3): A(f"v_permlane32_swap_b32 v{SM+1+2*qt}, v{SM+2*qt}")
    A("s_nop 1")
    for qt in range(3): A(f"v_add_f32 v{SM+2*qt}, v{SM+2*qt}, v{SM+1+2*qt}")
    g.lwait0()
    stamp("C")
    PB, VF, WR = 96, 144, 152
    def p_read_thunks(s):
        base = PB + 24*(s & 1); out = []
        for u in range(2):
            for qt in range(3):
                f = (2*s+u)*3 + qt
                out.append(lambda f=f, u=u, qt=qt: g.ds(f"ds_read_b128 {vr(base+(u*3+qt)*4,4)}, v{18 if f < 64 else 19} offset:{(f&63)*1024}", f"P{s}"))
        return out
    SL = {"A": (33, 0, "s47", 0), "B": (33, 16*K1, "s47", 16*K1), "C": (33, 32*K1, "s47", 32*K1)}
    for n in (12, 13, 14, 15): SL[f"R{n}"] = (35, ring_off(n), "s45", GY + ring_off(n))
    plan = {2: ["A"], 5: ["A", "B"], 7: ["C"], 8: ["A", "B"], 10: ["C"], 11: ["A", "B"], 12: ["R12"], 13: ["C", "R13"], 14: ["A", "B", "R14"], 15: ["R15"]}
    WLOC = {}; occ = {}; wn = [0]; wreg_of = {}; nreg = [0]
    def w_fill2(slot):
        u = wn[0]; wn[0] += 1
        WLOC[u] = slot; occ[slot] = u
        _, _, ms, mo = SL[slot]
        A(f"s_add_u32 m0, {ms}, {mo}"); A(f"s_add_u32 s53, s39, {u}"); A("s_and_b32 s53, s53, 15"); A("s_mul_i32 s53, s53, 14336")
        for i in range(2): g.vm(f"buffer_load_dwordx4 v{31+i}, s[24:27], s53 offen offset:{1024*i}{wflag} lds", f"W{u}")
    def w_read(u, dst):
        rb, off, _, _ = SL[WLOC[u]]
        wreg_of[u] = dst
        for ct in range(2):
            for e in range(2): g.ds(f"ds_read_b64_tr_b16 {vr(dst+4*ct+2*e,2)}, v{rb+ct} offset:{off+e*512}", f"WF{u}")
    for s in range(16):
        g.c(f"D stage {s}")
        rd = [occ[sl] for sl in plan.get(s, []) if sl in occ]
        g.vwait(f"V{s}", *[f"W{u}" for u in rd])
        A("s_barrier")
        if s in (4, 8, 12): stamp(f"d{s}")
        for u in range(2):
            for e in range(2):
                g.ds(f"ds_read_b64_tr_b16 {vr(VF+4*u+2*e,2)}, v30 offset:{ring_off(s)+(4*u+e)*4096}", f"VF{s}")
        if s == 0:
            for f in p_read_thunks(0): f()
        for u in rd:
            w_read(u, WR + 8*nreg[0]); nreg[0] += 1
        if s == 10:
            for qt in range(3): g.ds(f"ds_write_b32 v38, v{SM+2*qt} offset:{qt*1024}", "sumw")
        if s == 12:
            for qt in range(3):
                for k in range(2): g.ds(f"ds_read_b128 {vr(EX+qt*8+k*4,4)}, v37 offset:{qt*1024+k*16}", "sumr")
        g.lwait(f"VF{s}", f"P{s}")
        base = PB + 24*(s & 1)
        mf = [lambda u=u, qt=qt: mfma(ACC+16*qt, VF+4*u, base+(u*3+qt)*4, s == 0 and u == 0) for u in range(2) for qt in range(3)]
        oth = []
        def dmas(s=s):
            if g.lq: g.lwait0()
            A("s_barrier")
            for sl in plan.get(s, []): w_fill2(sl)
            if s + 4 < 16: v_fill(s + 4)
        oth.append(dmas)
        if s < 15: oth += p_read_thunks(s + 1)
        interleave(mf, oth)
        if s == 12:
            for qt in range(3):
                b = EX + qt*8
                for k in range(1, 8): A(f"v_add_f32 v{b}, v{b}, v{b+k}")
                A(f"v_rcp_f32 v{RC+qt}, v{b}")
    assert wn[0] == 16 and nreg[0] <= 10, (wn, nreg)
    stamp("D")
    late = [u for u in range(16) if u not in wreg_of]
    A("s_lshr_b32 s3, s39, 1"); A("s_sub_u32 s3, s4, s3"); A("s_and_b32 s3, s3, 7")
    A("s_mul_i32 s3, s3, 6144"); A(f"s_add_u32 s3, s3, {O_BASE}"); A("v_add_u32 v39, s3, v18")
    A("s_mul_i32 s56, s7, 86016"); A("s_mul_i32 s3, s4, 12288"); A("s_add_u32 s56, s56, s3")
    MASKW = 7*2048
    A(f"v_mov_b32 v44, {MASKW}")
    A("s_nop 4")
    for qt in range(3):
        for j in range(8): A(f"v_cvt_pk_bf16_f32 v{ACC+16*qt+j}, v{ACC+16*qt+2*j}, v{ACC+16*qt+2*j+1}")
        for a in range(2): g.ds(f"ds_write_b128 v39, {vr(ACC+16*qt+4*a,4)} offset:{(a*3+qt)*1024}")
    A(f"v_add_u32 v39, {O_BASE}, v18")
    g.lwait0(); A("s_barrier")
    stamp("O")
    A("s_cmp_eq_u32 s4, 7")
    A("s_cbranch_scc1 L_w7")
    OB, NOB = 232, 6
    korder = [u for u in range(16) if u in wreg_of] + late
    seq = [(ct, qt, u) for ct in range(2) for qt in range(3) for u in korder]
    lateregs = [PB + 8*i for i in range(6)] + [VF]
    def o_read(i):
        ct, qt, u = seq[i]
        g.ds(f"ds_read_b128 {vr(OB+4*(i % NOB),4)}, v39 offset:{(u*3+qt)*1024}", f"O{i}")
    def store_thunks(ti):
        ct, qt = ti // 3, ti % 3
        acc = ACC + (ti % 3)*16; out = []
        for a in range(2):
            for r in range(8*a, 8*a+8): out.append(lambda r=r: A(f"v_mul_f32 v{acc+r}, v{acc+r}, v{RC+qt}"))
            for j in range(4*a, 4*a+4): out.append(lambda j=j: A(f"v_cvt_pk_bf16_f32 v{acc+j}, v{acc+2*j}, v{acc+2*j+1}"))
            k = ti*2 + a
            def st(a=a, k=k):
                A(f"s_add_u32 s57, s56, {(k >> 2)*4096}")
                g.vm(f"buffer_store_dwordx4 {vr(acc+4*a,4)}, v18, s[28:31], s57 offen offset:{(k & 3)*1024}{sflag}", "ST")
            out.append(st)
        return out
    AHEAD = 4
    for i in range(AHEAD): o_read(i)
    pend = []
    for i, (ct, qt, u) in enumerate(seq):
        ti, pos = i // 16, i % 16
        g.lwait(f"O{i}", f"WF{u}")
        mfma(ACC + (ti % 3)*16, wreg_of[u] + 4*ct, OB + 4*(i % NOB), pos == 0)
        if i + AHEAD < len(seq): o_read(i + AHEAD)
        if ti == 0 and 2 <= pos < 2 + len(late):
            lu = late[pos - 2]
            g.vwait(f"W{lu}"); w_read(lu, lateregs[pos - 2])
        if ti >= 1 and pos == 3: pend += store_thunks(ti - 1)
        for _ in range(3):
            if pend: pend.pop(0)()
    stamp("E")
    assert not pend
    A("s_nop 12")
    for f in store_thunks(5): f()
    A("s_waitcnt vmcnt(0)")
    g.vq = []
    A("s_barrier")
    stamp("P")
    A("s_cmp_ge_u32 s4, 6")
    A("s_cbranch_scc1 L_fin")
    A("v_cmp_gt_u32 vcc, 336, v0")
    A("s_mov_b32 s16, s60"); A("s_mov_b32 s17, s61"); A(f"s_mov_b32 s18, {8*96*896*2}")
    A("s_and_saveexec_b64 s[56:57], vcc")
    A("s_mov_b32 s34, 0")
    A("s_mov_b32 s36, 0")
    g.lab("L_red")
    A("ds_read_b32 v45, v44")
    A("s_waitcnt lgkmcnt(0)")
    A("v_readfirstlane_b32 s35, v45")
    A("s_add_u32 s36, s36, 1")
    A("s_andn2_b32 s37, s35, s34")
    A("s_cbranch_scc0 L_red_next")
    for h in range(16):
        A(f"s_bitcmp1_b32 s37, {h}")
        A(f"s_cbranch_scc0 L_red_s{h}")
        A(f"s_mov_b32 s53, {h*86016}")
        A(f"buffer_load_dwordx4 {vr(48+4*h,4)}, v40, s[28:31], s53 offen sc1")
        g.lab(f"L_red_s{h}")
    A("s_or_b32 s34, s34, s37")
    A("s_cmp_eq_u32 s34, 0xffff")
    A("s_cbranch_scc1 L_red_done")
    g.lab("L_red_next")
    A("s_sleep 1")
    A("s_cmp_lt_u32 s36, 0x400000")
    A("s_cbranch_scc1 L_red")
    g.lab("L_red_done")
    stamp("W")
    A("s_mov_b32 s58, 0xffff0000")
    A("s_waitcnt vmcnt(0)")
    for h in range(16):
        for j in range(4):
            s = 48 + 4*h + j
            if h == 0:
                A(f"v_lshlrev_b32 v{120+2*j}, 16, v{s}"); A(f"v_and_b32 v{121+2*j}, s58, v{s}")
            else:
                t = 128 + 2*j
                A(f"v_lshlrev_b32 v{t}, 16, v{s}"); A(f"v_and_b32 v{t+1}, s58, v{s}")
                A(f"v_pk_add_f32 {vr(120+2*j,2)}, {vr(120+2*j,2)}, {vr(t,2)}")
    for j in range(4): A(f"v_cvt_pk_bf16_f32 v{136+j}, v{120+2*j}, v{121+2*j}")
    A("buffer_store_dwordx4 v[136:139], v41, s[16:19], 0 offen")
    A("s_mov_b64 exec, -1")
    A("s_branch L_fin")
    g.lab("L_w7")
    A("s_lshl_b32 s3, s54, 4"); A("v_mov_b32 v42, s3"); A("v_lshlrev_b32 v43, 2, v2"); A("v_mov_b32 v46, 1")
    A("s_lshl_b32 s3, s7, 2"); A("v_mov_b32 v45, s3"); A("v_mov_b32 v47, 0")
    A("s_mov_b32 s57, 0")
    g.lab("L_poll0")
    A("global_load_dword v48, v42, s[62:63] sc1")
    A("s_waitcnt vmcnt(0)")
    A("v_readfirstlane_b32 s3, v48")
    A("s_add_u32 s57, s57, 1")
    A("s_cmp_ge_u32 s3, 16")
    A("s_cbranch_scc1 L_poll0_done")
    A("s_sleep 8")
    A("s_cmp_lt_u32 s57, 0x20000")
    A("s_cbranch_scc1 L_poll0")
    g.lab("L_poll0_done")
    A("ds_write_b32 v44, v47")
    A("s_waitcnt lgkmcnt(0)")
    A("s_barrier")
    A("s_mov_b64 exec, 1")
    A("global_store_dword v45, v46, s[32:33] sc1")
    A("s_mov_b64 exec, 0xffff")
    g.lab("L_poll")
    A("global_load_dword v48, v43, s[32:33] sc1")
    A("s_waitcnt vmcnt(0)")
    A("v_cmp_eq_u32 vcc, 1, v48")
    A("s_add_u32 s57, s57, 1")
    A("s_nop 0")
    A("v_mov_b32 v47, vcc_lo")
    A("ds_write_b32 v44, v47")
    A("s_cmp_eq_u32 vcc_lo, 0xffff")
    A("s_cbranch_scc1 L_poll_done")
    A(f"s_sleep {sleep}")
    A("s_cmp_lt_u32 s57, 0x20000")
    A("s_cbranch_scc1 L_poll")
    g.lab("L_poll_done")
    A("s_waitcnt lgkmcnt(0)")
    A("s_mov_b64 exec, -1")
    g.lab("L_fin")
    if stamps:
        A("s_waitcnt vmcnt(0)")
        stamp("end")
        A("s_waitcnt lgkmcnt(0)")
        A(f"s_cmp_lg_u32 s4, {swave}")
        A("s_cbranch_scc1 L_end")
        A("s_add_u32 s42, s42, 0x8000000"); A("s_addc_u32 s43, s43, 0")
        A(f"s_mul_i32 s3, s2, {8*len(stamps)}")
        A("v_mov_b32 v10, s3")
        for j in range(len(stamps)):
            A(f"v_mov_b32 v12, s{64+2*j}"); A(f"v_mov_b32 v13, s{65+2*j}")
            A(f"global_store_dwordx2 v10, v[12:13], s[42:43] offset:{j*8}")
            A("s_nop 1")
    g.lab("L_end")
    A("s_endpgm")
    g.lab("L_code_end")
    g.L.append(f'''.section .rodata,"a"
.p2align 6
.amdhsa_kernel {KN}
  .amdhsa_next_free_vgpr 256
  .amdhsa_next_free_sgpr 102
  .amdhsa_accum_offset 256
  .amdhsa_group_segment_fixed_size 0
  .amdhsa_kernarg_size 104
  .amdhsa_user_sgpr_count 2
  .amdhsa_user_sgpr_kernarg_segment_ptr 1
  .amdhsa_system_sgpr_workgroup_id_x 1
.end_amdhsa_kernel''')
    return finalize("\n".join(g.L) + "\n")

def finalize(s):
    t = s.replace("CODE_BYTES", "0x1000")
    with tempfile.TemporaryDirectory() as d:
        open(d + "/t.s", "w").write(t)
        subprocess.check_call(["clang", "-x", "assembler", "-target", "amdgcn-amd-amdhsa", "-mcpu=gfx950", "-c", d + "/t.s", "-o", d + "/t.o"])
        o = subprocess.check_output(["llvm-objdump", "-t", d + "/t.o"]).decode()
    sym = {l.split()[-1]: int(l.split()[0], 16) for l in o.splitlines() if re.match(r"^[0-9a-f]{16} ", l)}
    n = sym["L_code_end"] - sym["L_code_start"] - 128
    assert 0x100 < n < 32768, n
    return s.replace("CODE_BYTES", hex(n))

ALLST = ("start", "a0", "a4", "a9", "A", "B", "C1", "C", "d4", "d8", "d12", "D", "O", "E", "P", "W", "end")
if __name__ == "__main__":
    open("k5.s", "w").write(gen())
    open("k5_st.s", "w").write(gen(stamps=ALLST))
    open("k5_st4.s", "w").write(gen(stamps=ALLST, swave=4))
    open("k5_nocls.s", "w").write(gen(stamps=ALLST, classes=False))
    open("k5_nocls_norot.s", "w").write(gen(stamps=ALLST, classes=False, rot=False))
    open("k5_nocls_notlb.s", "w").write(gen(stamps=ALLST, classes=False, tlb=False))
    open("k5_nocls_k10.s", "w").write(gen(stamps=ALLST, classes=False, kpat=[0]*10+[2,2,2,2]))
    print(ALLST)
```

```python
from gen5 import *
V = {
 "w5_cls": dict(),
 "w5_cls_nt": dict(wflag=" nt"),
 "w5_nocls": dict(classes=False),
 "w5_nocls_nt": dict(classes=False, wflag=" nt"),
}
for k, kw in V.items():
    open(k + ".s", "w").write(gen(**kw))
    open(k + "_st.s", "w").write(gen(stamps=ALLST, **kw))
s = gen(classes=False).replace(" nt lds", " lds")
open("w5_nocls_kvdef.s", "w").write(s)
```

```python
import sys, re, subprocess, tempfile
NAME = "concat_heads__mha_block_cached__mha_block_cached__near_ridge"
KN = NAME + "_kernel"
K1 = 1024
GX, GY, GZ = 64*K1, 96*K1, 128*K1
XS_BASE, XS_SZ = 64*K1, 6144
SCR = 48*K1
O_BASE = 48*K1
MASKW = 32*K1
FLAG_OFF = 24 << 20
LOG2E_16 = 0x3DB8AA3B
ACC, QR = 48, 144

def vr(a, n): return f"v[{a}:{a+n-1}]"

class Gen:
    def __init__(self):
        self.L = []; self.vq = []; self.lq = []
    def A(self, s): self.L.append("    " + s)
    def lab(self, s): self.L.append(s + ":")
    def c(self, s): self.L.append("    ; " + s)
    def vm(self, s, tag): self.A(s); self.vq.append(tag)
    def vwait(self, *tags):
        idx = max([i for i, t in enumerate(self.vq) if t in tags], default=-1)
        if idx < 0: return
        n = len(self.vq) - 1 - idx
        self.vq = self.vq[idx+1:]
        self.A(f"s_waitcnt vmcnt({min(n,62)})")
    def ds(self, s, tag=None): self.A(s); self.lq.append(tag)
    def lwait(self, *tags):
        idx = max([i for i, t in enumerate(self.lq) if t in tags], default=-1)
        if idx < 0: return
        n = len(self.lq) - 1 - idx
        self.lq = self.lq[idx+1:]
        self.A(f"s_waitcnt lgkmcnt({min(n,14)})")
    def lwait0(self):
        self.lq = []; self.A("s_waitcnt lgkmcnt(0)")

def interleave(mf, oth):
    n = len(mf); k = 0
    for i, m in enumerate(mf):
        m()
        upto = (len(oth) * (i + 1) + n - 1) // n
        while k < upto: oth[k](); k += 1
    while k < len(oth): oth[k](); k += 1

class Feeder:
    def __init__(self, items, slots):
        self.items = items; self.slots = slots; self.k = 0; self.i = 0
    def __call__(self):
        self.i += 1
        upto = min(len(self.items), (len(self.items) * self.i + self.slots - 1) // self.slots)
        while self.k < upto: self.items[self.k](); self.k += 1
    def flush(self):
        while self.k < len(self.items): self.items[self.k](); self.k += 1

def gen(stamps=(), kpat=None, sleep=2, npre=6, c2first=0, wD=None, convplan=None, eprio=1, nsm=7,
        w7n=2, wc1=2, wc2=2, passes=((0, 1), (2, 3), (4,), (5,)), ldist=2, per=2):
    g = Gen(); A = g.A
    if kpat is None: kpat = [0]*11 + [2, 3, 3]
    hdr = open("cdna_kernels/" + NAME + ".s.ref").read().split("\n")
    g.L += [l for l in hdr if l.startswith(";") and "@launch" not in l]
    g.L.append("; @launch grid=(256,1,1) block=(512,1,1) lds=163840")
    g.L.append('.amdgcn_target "amdgcn-amd-amdhsa--gfx950"\n.text')
    g.L.append(f".globl {KN}\n.p2align 8\n.type {KN},@function")
    g.lab(KN)
    def stamp(name):
        if name in stamps:
            i = stamps.index(name)
            A(f"s_memrealtime s[{64+2*i}:{65+2*i}]")
    A("s_cmp_ge_u32 s2, 256")
    A("s_cbranch_scc1 L_end")
    for i in range(len(stamps)): A(f"s_mov_b64 s[{64+2*i}:{65+2*i}], 0")
    stamp("start")
    A("s_lshr_b32 s5, s2, 2"); A("s_and_b32 s5, s5, 1")
    A("s_mul_i32 s3, s5, 40")
    A("s_add_u32 s48, s0, s3"); A("s_addc_u32 s49, s1, 0")
    A("s_load_dwordx8 s[32:39], s[48:49], 0")
    A("s_load_dwordx2 s[40:41], s[48:49], 32")
    A("s_load_dwordx4 s[60:63], s[0:1], 80")
    A("s_load_dwordx2 s[42:43], s[0:1], 96")
    A("s_getpc_b64 s[50:51]")
    g.lab("L_pc")
    A("v_lshlrev_b32 v1, 7, v0")
    A("v_min_u32 v1, CODE_BYTES, v1")
    A("global_load_dword v191, v1, s[50:51]")
    A("v_lshrrev_b32 v1, 6, v0")
    A("v_and_b32 v2, 63, v0")
    A("v_readfirstlane_b32 s4, v1")
    A("s_and_b32 s7, s2, 3"); A("s_lshr_b32 s3, s2, 3"); A("s_and_b32 s3, s3, 3")
    A("s_lshl_b32 s3, s3, 2"); A("s_add_u32 s7, s7, s3")
    A("s_lshr_b32 s6, s2, 5")
    A("v_lshrrev_b32 v3, 5, v2"); A("v_and_b32 v4, 31, v2"); A("v_lshrrev_b32 v5, 4, v2")
    for i in range(2):
        d = 28 + i
        A(f"v_add_u32 v{d}, {2*i}, v3"); A(f"v_lshlrev_b32 v{d}, 1, v{d}"); A(f"v_xor_b32 v{d}, v{d}, v4"); A(f"v_lshlrev_b32 v{d}, 4, v{d}")
    A("v_lshl_add_u32 v6, v1, 2, v3")
    A("v_and_b32 v7, 2, v1"); A("v_lshlrev_b32 v7, 6, v7")
    A("v_xor_b32 v12, v28, v7"); A("v_lshl_add_u32 v12, v6, 13, v12")
    A("v_xor_b32 v13, v29, v7"); A("v_lshl_add_u32 v13, v6, 13, v13"); A(f"v_add_u32 v13, {16384-1024}, v13")
    A("v_and_b32 v7, 1, v1"); A("v_lshlrev_b32 v7, 7, v7")
    A("v_xor_b32 v28, v28, v7"); A("v_lshl_add_u32 v28, v6, 9, v28")
    A("v_xor_b32 v29, v29, v7"); A("v_lshl_add_u32 v29, v6, 9, v29")
    def swz4(d, src, tmp):
        A(f"v_lshrrev_b32 v{tmp}, 1, v{src}"); A(f"v_and_b32 v{tmp}, 1, v{tmp}")
        A(f"v_xor_b32 v{d}, v{src}, v{tmp}"); A(f"v_and_b32 v{d}, 1, v{d}"); A(f"v_lshl_or_b32 v{d}, v{d}, 1, v{tmp}")
    A("v_mul_u32_u24 v7, 3, v1"); A("v_add_u32 v15, v7, v5"); swz4(14, 15, 16)
    A("v_xor_b32 v14, v14, v2"); A("v_and_b32 v14, 3, v14"); A("v_lshlrev_b32 v14, 4, v14")
    A("v_lshrrev_b32 v6, 2, v2"); A("v_lshl_add_u32 v6, v7, 2, v6"); A("v_mul_u32_u24 v6, 896, v6"); A("v_add_u32 v14, v14, v6")
    A("s_lshl_b32 s47, s4, 11")
    A(f"s_mul_i32 s52, s4, 768"); A(f"s_add_u32 s52, s52, {XS_BASE}")
    A("s_lshl_b32 s45, s4, 12")
    A("s_lshl_b32 s55, s4, 15")
    A("s_mov_b32 s10, 86016"); A("s_mov_b32 s11, 0x20000"); A(f"s_mov_b32 s14, {447*8192+512}"); A("s_mov_b32 s15, 0x20000")
    A("s_mov_b32 s18, 262144"); A("s_mov_b32 s19, 0x20000")
    A("s_mul_i32 s56, s6, 86016"); A("s_lshl_b32 s57, s7, 9")
    A("s_lshl_b32 s44, s6, 4"); A("s_add_u32 s44, s44, s7"); A("s_lshl_b32 s46, s44, 18")
    A("s_lshr_b32 s58, s6, 1"); A("s_lshr_b32 s3, s7, 2"); A("s_add_u32 s58, s58, s3"); A("s_and_b32 s58, s58, 3")
    A("s_mul_i32 s58, s58, 7"); A("s_lshr_b32 s58, s58, 1")
    A("s_lshl_b32 s59, s6, 1")
    A("v_lshrrev_b32 v6, 3, v2"); A("v_and_b32 v7, 7, v2")
    for i in range(4):
        d = 8 + i
        if i & 1: A(f"v_xor_b32 v{d}, 4, v5"); A(f"v_xor_b32 v{d}, v{d}, v7")
        else: A(f"v_xor_b32 v{d}, v5, v7")
        A(f"v_lshlrev_b32 v{d}, 4, v{d}")
        A(f"v_lshl_add_u32 v{d}, v6, 9, v{d}")
        if i: A(f"v_add_u32 v{d}, {i*(4096-1024)}, v{d}")
    A("s_waitcnt lgkmcnt(0)")
    A("s_add_u32 s8, s32, s56"); A("s_addc_u32 s9, s33, 0")
    A("s_add_u32 s12, s38, s57"); A("s_addc_u32 s13, s39, 0")
    A("s_add_u32 s16, s34, s46"); A("s_addc_u32 s17, s35, 0")

    def a_load_thunks(st):
        slot = st & 3
        def x():
            A(f"s_add_u32 m0, s52, {slot*XS_SZ}"); A("s_lshl_b32 s53, s58, 6")
            A("s_mov_b32 exec_hi, 0xffff")
            g.vm(f"buffer_load_dwordx4 v14, s[8:11], s53 offen lds", f"A{st}")
            A("s_mov_b32 exec_hi, -1")
        def w0():
            A(f"s_add_u32 m0, s47, {slot*16384}"); A("s_lshl_b32 s53, s58, 18")
            g.vm(f"buffer_load_dwordx4 v12, s[12:15], s53 offen lds", f"A{st}")
        def w1():
            g.vm(f"buffer_load_dwordx4 v13, s[12:15], s53 offen offset:1024 lds", f"A{st}")
            A("s_add_u32 s58, s58, 1"); A("s_cmp_eq_u32 s58, 14"); A("s_cselect_b32 s58, 0, s58")
        return [x, w0, w1]
    st8 = {"kp": 0, "KG": None, "KS": None, "ORD": None}
    def k_issue(n):
        while n > 0:
            j = st8["ORD"][st8["kp"] >> 2]; t, c = j >> 2, j & 3
            A(f"s_add_u32 m0, s45, {st8['KG'][j]}"); A(f"s_add_u32 s53, s55, {t*16384 + c*128}")
            while n > 0:
                i = st8["kp"] & 3
                g.vm(f"buffer_load_dwordx4 v{8+i}, s[16:19], s53 offen offset:{1024*i} nt lds", f"F{j}")
                st8["kp"] += 1; n -= 1
                if st8["kp"] & 3 == 0: break
    def k_thunks(n): return [lambda: k_issue(1) for _ in range(n)]
    KG1 = [GZ, GY, GZ, GY, GX, GZ, GY, GX]; ORD1 = list(range(8))
    KG2 = [GY, GZ, GZ, 0, 32*K1, GX, GX, GY]; ORD2 = [2, 3, 4, 5, 0, 1, 6, 7]
    if npre == 7:
        KG2 = [GY, GZ, GY, GZ, 0, 32*K1, GX, GX]; ORD2 = [2, 3, 4, 5, 6, 0, 1, 7]
    A("s_bitcmp1_b32 s2, 5"); A("s_cbranch_scc1 L_first2")
    for st in range(3):
        for f in a_load_thunks(st): f()
    vq1 = list(g.vq); vq2 = []
    if c2first:
        A("s_branch L_first_done")
        g.lab("L_first2")
        g.vq = []; st8.update(KG=KG2, kp=0, ORD=ORD2)
        k_issue(c2first)
        vq2 = list(g.vq)
        g.lab("L_first_done")
    else:
        g.lab("L_first2")
    A("s_add_u32 s20, s36, s46"); A("s_addc_u32 s21, s37, 0"); A("s_mov_b32 s22, 262144"); A("s_mov_b32 s23, 0x20000")
    A("s_mul_i32 s3, s7, 229376"); A("s_add_u32 s24, s40, s3"); A("s_addc_u32 s25, s41, 0"); A("s_mov_b32 s26, 229376"); A("s_mov_b32 s27, 0x20000")
    A("s_lshl_b32 s54, s5, 3"); A("s_add_u32 s54, s54, s6")
    A(f"s_mul_i32 s3, s54, {16*86016}")
    A("s_add_u32 s28, s42, s3"); A("s_addc_u32 s29, s43, 0"); A(f"s_mov_b32 s30, {16*86016}"); A("s_mov_b32 s31, 0x20000")
    A(f"s_lshl_b32 s3, s54, 12"); A(f"s_add_u32 s3, s3, {FLAG_OFF}")
    A("s_add_u32 s32, s42, s3"); A("s_addc_u32 s33, s43, 0")
    A("s_cmp_lg_u32 s4, 7"); A("s_cbranch_scc1 L_noclear")
    A("s_lshl_b32 s3, s7, 2"); A("v_mov_b32 v189, s3"); A("v_mov_b32 v190, 0")
    A("s_mov_b64 exec, 1")
    A("global_atomic_swap v188, v189, v190, s[32:33] sc0")
    A("s_mov_b64 exec, -1")
    g.lab("L_noclear")
    A("v_lshrrev_b32 v43, 2, v2"); A("v_and_b32 v43, 3, v43"); A("v_and_b32 v44, 3, v2"); A("v_and_b32 v45, 15, v2")
    A("v_and_b32 v46, 1, v5"); A("v_lshl_or_b32 v46, v46, 2, v43"); A("v_lshlrev_b32 v46, 5, v46")
    A("v_lshlrev_b32 v47, 3, v44"); A("v_lshl_add_u32 v47, v1, 6, v47"); A("v_xor_b32 v46, v46, v47")
    A("v_lshl_add_u32 v46, v43, 9, v46")
    A("v_lshl_add_u32 v15, v5, 12, v46"); A("v_xor_b32 v16, 32, v15")
    A(f"v_add_u32 v30, {GY}, v15"); A("v_xor_b32 v38, 32, v30")
    swz4(17, 43, 46)
    A("v_xor_b32 v17, v17, v5"); A("v_lshlrev_b32 v17, 4, v17"); A("v_lshl_add_u32 v17, v45, 6, v17"); A(f"v_add_u32 v17, {XS_BASE}, v17")
    A("v_lshlrev_b32 v18, 4, v2"); A("v_add_u32 v19, 0x10000, v18")
    A("v_lshrrev_b32 v20, 1, v45"); A("v_xor_b32 v20, v20, v5"); A("v_lshlrev_b32 v20, 4, v20")
    A("v_lshl_add_u32 v20, v45, 7, v20"); A("v_lshl_add_u32 v20, v1, 12, v20"); A(f"v_add_u32 v20, {GX}, v20")
    A("v_xor_b32 v21, 64, v20"); A(f"v_add_u32 v22, {GZ-GX}, v20"); A(f"v_add_u32 v23, {GZ-GX}, v21")
    A("s_mul_i32 s3, s4, 6144"); A("v_add_u32 v39, s3, v18")
    A("v_and_b32 v24, 1, v5"); A("v_lshlrev_b32 v24, 3, v24"); A("v_lshl_add_u32 v24, v45, 4, v24"); A("v_lshl_add_u32 v24, v3, 8, v24"); A("v_add_u32 v24, s3, v24")
    A("v_and_b32 v25, 1, v5"); A("v_lshl_or_b32 v25, v25, 1, v3"); A("v_lshl_add_u32 v25, v25, 4, v45"); A("v_lshlrev_b32 v25, 5, v25"); A(f"v_add_u32 v25, {SCR}, v25")
    A("v_lshl_add_u32 v26, v3, 4, v45"); A("v_lshlrev_b32 v26, 5, v26"); A(f"v_add_u32 v26, {SCR+2048}, v26")
    A("v_lshl_add_u32 v27, v1, 2, v25"); A("v_lshl_add_u32 v37, v1, 2, v26")
    A("v_and_b32 v31, 1, v5"); A("v_lshlrev_b32 v31, 2, v31"); A("v_xor_b32 v31, v31, v7"); A("v_lshlrev_b32 v31, 4, v31")
    A("v_mul_u32_u24 v32, 896, v6"); A("v_add_u32 v31, v31, v32"); A("v_lshl_add_u32 v31, v1, 7, v31")
    A("s_cmp_eq_u32 s4, 7"); A("s_cselect_b32 s3, 0x1000000, 0"); A("v_add_u32 v31, s3, v31")
    A(f"v_add_u32 v32, {8*896-1024}, v31")
    A("v_lshrrev_b32 v33, 1, v43"); A("v_lshlrev_b32 v33, 6, v33"); A("v_lshl_or_b32 v33, v44, 4, v33")
    A("v_lshl_add_u32 v33, v43, 7, v33"); A("v_lshl_add_u32 v33, v5, 9, v33"); A("v_lshl_add_u32 v33, v1, 12, v33")
    A("v_xor_b32 v34, 64, v33"); A(f"v_add_u32 v35, {GY}, v33"); A(f"v_add_u32 v36, {GY}, v34")
    A("s_mul_i32 s3, s7, 5376"); A("v_lshlrev_b32 v40, 4, v0"); A("v_add_u32 v40, s3, v40")
    A("v_lshrrev_b32 v42, 10, v40")
    A("v_mul_u32_u24 v43, 43, v42"); A("v_lshrrev_b32 v43, 9, v43")
    A("v_mul_u32_u24 v46, 12, v43"); A("v_sub_u32 v42, v42, v46")
    A("v_and_b32 v46, 1, v42"); A("v_lshlrev_b32 v41, 7, v43"); A("v_lshl_add_u32 v41, v46, 6, v41")
    A("v_bfe_u32 v47, v40, 8, 2"); A("v_lshl_add_u32 v41, v47, 4, v41")
    A("v_lshrrev_b32 v42, 1, v42"); A("v_lshlrev_b32 v42, 4, v42")
    A("v_bfe_u32 v47, v40, 4, 4"); A("v_add_u32 v42, v42, v47")
    A("s_mul_i32 s3, s6, 96"); A("v_add_u32 v42, s3, v42"); A("v_mul_u32_u24 v42, 1792, v42"); A("v_add_u32 v41, v41, v42")
    A("s_mul_i32 s3, s5, 896"); A("v_add_u32 v41, s3, v41")
    A("v_add_u32 v42, s45, v18")
    A(f"s_mov_b32 s56, 0x{LOG2E_16:x}"); A(f"s_mov_b32 s57, 0x{LOG2E_16|0x80000000:x}")

    def mfma(d, a, b, first):
        A(f"v_mfma_f32_16x16x32_bf16 {vr(d,4)}, {vr(a,4)}, {vr(b,4)}, {'0' if first else vr(d,4)}")
    def pack(base):
        return [lambda m=m: A(f"v_cvt_pk_bf16_f32 v{base+m}, v{base+2*m}, v{base+2*m+1}") for m in range(4)]
    def k_read(j):
        KG = st8["KG"][j]
        for u in range(2):
            for a in range(2):
                dst = vr(st8["KS"][j] + (u*2+a)*4, 4)
                if KG == GZ: g.ds(f"ds_read_b128 {dst}, v{22+u} offset:{a*2048}", f"KF{j}")
                elif KG < GX: g.ds(f"ds_read_b128 {dst}, v{96+u} offset:{KG+a*2048}", f"KF{j}")
                else: g.ds(f"ds_read_b128 {dst}, v{20+u} offset:{KG-GX+a*2048}", f"KF{j}")
    def WR_(j):
        g.vwait(f"F{j}"); k_read(j); g.lwait(f"KF{j}")
    NA = 14
    def a_read_thunks(st):
        slot = st & 3; base = 96 + 32*(st & 1); out = []
        for a in range(2):
            for e in range(2):
                out.append(lambda a=a, e=e: g.ds(f"ds_read_b64_tr_b16 {vr(base+4*a+2*e,2)}, v{15+a} offset:{slot*16384+e*2048}"))
        for j in range(6):
            out.append(lambda j=j: g.ds(f"ds_read_b128 {vr(base+8+4*j,4)}, v17 offset:{slot*XS_SZ+j*1024}"))
        return out
    def a_mfma_thunks(st):
        base = 96 + 32*(st & 1)
        return [lambda j=j, a=a: mfma(ACC+8*j+4*a, base+4*a, base+8+4*j, st == 0) for j in range(6) for a in range(2)]
    def ring_off(n): return (0 if (n >> 1) & 1 else 32768) + (n & 1) * 2048
    def v_thunks(n):
        row = 64*n if n < 8 else 64*(n-8) + 32
        def one(i):
            A(f"s_add_u32 m0, s45, {GY + ring_off(n)}"); A(f"s_mov_b32 s53, {row*512}")
            g.vm(f"buffer_load_dwordx4 v{28+i}, s[20:23], s53 offen offset:{1024*i} nt lds", f"V{n}")
        return [lambda i=i: one(i) for i in range(2)]
    def v_fill(n):
        row = 64*n if n < 8 else 64*(n-8) + 32
        A(f"s_add_u32 m0, s45, {GY + ring_off(n)}"); A(f"s_mov_b32 s53, {row*512}")
        for i in range(2): g.vm(f"buffer_load_dwordx4 v{28+i}, s[20:23], s53 offen offset:{1024*i} nt lds", f"V{n}")
    def q_read(j, n): g.ds(f"ds_read_b128 {vr(QR+4*n,4)}, v18 offset:{((j&3)*12+n)*1024}", f"Q{j}_{n//3}")
    LM0 = [12, 13, 14, 15, 16, 17]
    LS = [1, 3, 4, 5, 6, 7]
    NB1 = [44, 45, 46, 47, 8, 9]
    def max_thunks(acc, m):
        return [lambda: A(f"v_max3_f32 v{m}, v{acc}, v{acc+1}, v{acc+2}"), lambda: A(f"v_max3_f32 v{m}, v{m}, v{acc+3}, v{acc+4}"),
                lambda: A(f"v_max3_f32 v{m}, v{m}, v{acc+5}, v{acc+6}"), lambda: A(f"v_max_f32 v{m}, v{m}, v{acc+7}")]
    def exp_thunks(acc, nb, ls, first):
        out = []
        for r in range(8 + 4):
            if r < 8: out.append(lambda r=r: A(f"v_fma_f32 v{acc+r}, v{acc+r}, s56, v{nb}"))
            if 2 <= r < 10: out.append(lambda r=r-2: A(f"v_exp_f32 v{acc+r}, v{acc+r}"))
            if r >= 4:
                q = r - 4
                if first and q == 0: continue
                if first and q == 1: out.append(lambda: A(f"v_add_f32 v{ls}, v{acc}, v{acc+1}"))
                else: out.append(lambda q=q: A(f"v_add_f32 v{ls}, v{ls}, v{acc+q}"))
        return out
    def sm0_list():
        out = []
        for j in range(6):
            acc = ACC + 8*j
            out += max_thunks(acc, LM0[j])
            out.append(lambda j=j: A(f"v_mul_f32 v43, s57, v{LM0[j]}"))
            out += exp_thunks(acc, 43, LS[j], True)
        return out
    def xreduce(m, op, tmp):
        A("s_nop 1")
        for p in range(3): A(f"v_permlane32_swap_b32 v{m[2*p]}, v{m[2*p+1]}")
        A("s_nop 1")
        for p in range(3): A(f"{op} v{m[2*p]}, v{m[2*p]}, v{m[2*p+1]}")
        A(f"v_mov_b32 v{tmp}, v{m[4]}")
        A("s_nop 1")
        A(f"v_permlane16_swap_b32 v{m[0]}, v{m[2]}"); A(f"v_permlane16_swap_b32 v{m[4]}, v{tmp}")
        A("s_nop 1")
        A(f"{op} v{m[0]}, v{m[0]}, v{m[2]}"); A(f"{op} v{m[4]}, v{m[4]}, v{tmp}")
    def xbroadcast(d):
        A(f"v_mov_b32 v{d[2]}, v{d[0]}"); A(f"v_mov_b32 v{d[5]}, v{d[4]}")
        A("s_nop 1")
        A(f"v_permlane16_swap_b32 v{d[0]}, v{d[2]}"); A(f"v_permlane32_swap_b32 v{d[4]}, v{d[5]}")
        A("s_nop 1")
        A(f"v_mov_b32 v{d[1]}, v{d[0]}"); A(f"v_mov_b32 v{d[3]}, v{d[2]}")
        A("s_nop 1")
        A(f"v_permlane32_swap_b32 v{d[0]}, v{d[1]}"); A(f"v_permlane32_swap_b32 v{d[2]}, v{d[3]}")
        A("s_nop 1")
    def M(j, feed=None, skip=0, vm=()):
        t = j >> 2; cnt = 0
        vf = Feeder(list(vm), 11)
        for n in range(12):
            u, jq = n // 6, n % 6
            if n % 3 == 0: g.lwait(f"Q{j}_{n//3}")
            for a in range(2):
                mfma(ACC + 48*t + 8*jq + 4*a, st8["KS"][j] + (u*2+a)*4, QR + 4*n, (j & 3) == 0 and u == 0)
                cnt += 1
                if a == 0 and j < 7 and n >= 2: q_read(j+1, n-2)
                if a == 1: vf()
                if feed and cnt > skip: feed()
        if j < 7:
            A("s_nop 1")
            for n in (10, 11): q_read(j+1, n)
    RAWREG = [192, 200, 208, 216, 224, 232, 96, 104, 112, 120, 128, 136]
    def w_soff(u):
        A(f"s_add_u32 s53, s59, {u}"); A("s_and_b32 s53, s53, 15"); A("s_mul_i32 s53, s53, 14336")
    nraw = [0]
    def w_raw():
        u = nraw[0]; nraw[0] += 1
        w_soff(u)
        for i in range(2): g.vm(f"buffer_load_dwordx4 {vr(RAWREG[u]+4*i,4)}, v{31+i}, s[24:27], s53 offen offset:{1024*i}", f"W{u>>1}")
    def w_thunks(n):
        out = []
        for _ in range(n):
            u = nraw[0]; nraw[0] += 1
            def one(i, u=u):
                w_soff(u)
                g.vm(f"buffer_load_dwordx4 {vr(RAWREG[u]+4*i,4)}, v{31+i}, s[24:27], s53 offen offset:{1024*i}", f"W{u>>1}")
            out += [lambda one=one: one(0), lambda one=one: one(1)]
        return out
    def phaseAB(cls):
        nraw[0] = 0
        if cls == 2:
            st8["KS"] = [96, 112, 192, 208, 224, 240, 224, 240]
            for u in range(2): A(f"v_subrev_u32 v{96+u}, {GX}, v{20+u}")
            k_issue(20 - st8["kp"])
            if npre == 7:
                st8["KS"] = [96, 112, 160, 192, 208, 224, 240, 224]
                WR_(2); k_issue(4); WR_(3); k_issue(4); WR_(4); WR_(5); WR_(6)
            else: WR_(2); k_issue(4); WR_(3); WR_(4); WR_(5)
            A("s_barrier")
            for st in range(3):
                for f in a_load_thunks(st): f()
        else:
            st8["KS"] = [192, 208, 224, 240] * 2
        for st in range(NA):
            g.c(f"A stage {st} class {cls}")
            g.vwait(f"A{st}")
            A("s_barrier")
            stamp(f"a{st}")
            rd = a_read_thunks(st)
            ld = a_load_thunks(st + 3) if st + 3 < NA else []
            if cls == 1 and kpat[st]: ld.append(lambda nk=kpat[st]: k_issue(nk))
            if st == 0:
                for f in rd + ld: f()
            else:
                mf = a_mfma_thunks(st - 1)
                interleave(mf[:6], rd); interleave(mf[6:10], ld); mf[10](); mf[11]()
            g.lwait0()
        A("s_barrier")
        for f in a_mfma_thunks(NA - 1): f()
        for j in range(6):
            if j == 0: A("s_nop 0")
            for f in pack(ACC + 8*j): f()
            g.ds(f"ds_write2st64_b64 v24, {vr(ACC+8*j,2)}, {vr(ACC+8*j+2,2)} offset0:{2*j} offset1:{2*j+1}")
        g.lwait0()
        A("s_barrier")
        stamp("A")
        if cls == 2 and npre == 7:
            for r in range(16): A(f"v_mov_b32 v{128+r}, v{160+r}")
            st8["KS"][2] = 128
        for n in range(12): q_read(0, n)
        A("s_cmp_lg_u32 s4, 7"); A(f"s_cbranch_scc1 L_nocnt{cls}")
        A("s_lshl_b32 s3, s54, 4"); A("v_mov_b32 v44, s3"); A("v_mov_b32 v45, 1")
        A("s_mov_b64 exec, 1")
        A("global_atomic_add v44, v45, s[62:63]")
        A("s_mov_b64 exec, -1")
        g.lab(f"L_nocnt{cls}")
        fd = Feeder(sm0_list(), 92)
        V01 = lambda: v_thunks(0) + v_thunks(1)
        V23 = lambda: v_thunks(2) + v_thunks(3)
        if cls == 1:
            k_issue(8 - st8["kp"])
            WR_(0); k_issue(4); WR_(1); M(0, vm=k_thunks(8))
            WR_(2); M(1, vm=k_thunks(4))
            WR_(3); M(2, vm=k_thunks(4))
            WR_(4); M(3, vm=k_thunks(4))
            stamp("b4")
            M(4, fd, 4)
            WR_(5); M(5, fd, vm=V01())
            WR_(6); M(6, fd, vm=V23())
            WR_(7); M(7, fd, vm=w_thunks(w7n))
        else:
            k_read(0); k_read(1); g.lwait("KF1")
            if npre == 7:
                M(0, vm=k_thunks(4)); M(1); M(2, vm=V01()); M(3)
                stamp("b4")
                M(4, fd, 4, vm=V23()); M(5, fd); WR_(7); M(6, fd); M(7, fd, vm=w_thunks(w7n))
            else:
                M(0, vm=k_thunks(4)); M(1, vm=k_thunks(4)); M(2); M(3)
                stamp("b4")
                M(4, fd, 4, vm=V01()); WR_(6); M(5, fd); WR_(7); M(6, fd, vm=V23()); M(7, fd, vm=w_thunks(w7n))
        fd.flush()
        stamp("B")
    def phaseC():
        EX = 144
        MT = [20, 21, 22, 23, 10, 11]
        for j in range(6):
            for f in max_thunks(ACC + 48 + 8*j, MT[j]): f()
            A(f"v_max_f32 v{MT[j]}, v{MT[j]}, v{LM0[j]}")
        xreduce(MT, "v_max_f32", 43)
        g.ds(f"ds_write_b32 v27, v{MT[0]}"); g.ds(f"ds_write_b32 v37, v{MT[4]}")
        for _ in range(wc1): w_raw()
        g.lwait0(); A("s_barrier")
        stamp("C1")
        for z in range(2):
            for k in range(2): g.ds(f"ds_read_b128 {vr(EX+z*8+k*4,4)}, v{25+z} offset:{k*16}", f"mx{z}")
        for z in range(2):
            b = EX + z*8
            g.lwait(f"mx{z}")
            A(f"v_max3_f32 v{b}, v{b}, v{b+1}, v{b+2}"); A(f"v_max3_f32 v{b}, v{b}, v{b+3}, v{b+4}"); A(f"v_max3_f32 v{b}, v{b}, v{b+5}, v{b+6}")
            A(f"v_max_f32 v{b}, v{b}, v{b+7}")
            A(f"v_mul_f32 v{NB1[4*z]}, s57, v{b}")
        xbroadcast(NB1)
        for j in range(6): A(f"v_fma_f32 v{LM0[j]}, v{LM0[j]}, s56, v{NB1[j]}")
        for j in range(6): A(f"v_exp_f32 v{LM0[j]}, v{LM0[j]}")
        for j in range(6):
            acc = ACC + 8*j; f = LM0[j]
            sel = "op_sel:[0,1] op_sel_hi:[1,1]" if f & 1 else "op_sel_hi:[1,0]"
            for r in range(0, 8, 2): A(f"v_pk_mul_f32 {vr(acc+r,2)}, {vr(acc+r,2)}, {vr(f & ~1,2)} {sel}")
            for t in pack(acc): t()
            g.ds(f"ds_write_b128 v39, {vr(acc,4)} offset:{j*1024}")
            A(f"v_mul_f32 v{LS[j]}, v{LS[j]}, v{f}")
        for _ in range(wc2): w_raw()
        g.lwait0()
        stamp("C")
    A("s_bitcmp1_b32 s2, 5"); A("s_cbranch_scc1 L_cls2")
    g.vq = vq1; st8.update(KG=KG1, kp=0, ORD=ORD1)
    phaseAB(1)
    q1 = list(g.vq); l1 = list(g.lq)
    A("s_branch L_join")
    g.lab("L_cls2")
    g.vq = vq2; g.lq = []; st8.update(KG=KG2, kp=c2first, ORD=ORD2)
    phaseAB(2)
    q2 = list(g.vq)
    assert not l1 and not g.lq
    g.vq = q1 if len(q1) >= len(q2) else q2
    assert g.vq[-min(len(q1), len(q2)):] == (q2 if len(q1) >= len(q2) else q1), (q1, q2)
    g.lab("L_join")
    phaseC()
    PB = 144
    def VFr(s, a): return 240 if a == 0 else (244 if s & 1 == 0 else 248)
    def p_read_thunks(s):
        base = PB + 24*(s & 1); out = []
        for j in range(6):
            f = 6*s + j
            out.append(lambda f=f, j=j: g.ds(f"ds_read_b128 {vr(base+4*j,4)}, v{18 if f < 64 else 19} offset:{(f&63)*1024}", f"P{s}"))
        return out
    wreg_of = {}
    def w_tr_thunks(U, dst, rb, off):
        wreg_of[U] = dst
        return [lambda ct=ct, a=a, e=e: g.ds(f"ds_read_b64_tr_b16 {vr(dst+(ct*2+a)*4+2*e,2)}, v{rb+ct} offset:{off+e*2048+a*8}", f"WF{U}")
                for ct in range(2) for a in range(2) for e in range(2)]
    def w_conv_thunks(U):
        r = RAWREG[2*U]
        out = [lambda: g.vwait(f"W{U}")]
        out += [lambda i=i: g.ds(f"ds_write_b128 v42, {vr(r+4*i,4)} offset:{1024*i}") for i in range(4)]
        return out + w_tr_thunks(U, r, 33, 0)
    worder = list(range(nraw[0]))
    def w_ring(u):
        worder.append(u)
        A(f"s_add_u32 m0, s45, {GY + ring_off(u)}"); w_soff(u)
        for i in range(2): g.vm(f"buffer_load_dwordx4 v{31+i}, s[24:27], s53 offen offset:{1024*i} lds", f"W{u>>1}")
    def sm1_list():
        out = []
        for j in range(6):
            acc = ACC + 48 + 8*j
            out += exp_thunks(acc, NB1[j], LS[j], False)
            out += pack(acc)
            out.append(lambda acc=acc, j=j: g.ds(f"ds_write_b128 v39, {vr(acc,4)} offset:{49152+j*1024}"))
        return out
    fd = Feeder(sm1_list(), 12*nsm - 6)
    if wD is None: wD = {13: 1, 14: 1, 15: 2}
    if convplan is None: convplan = (7, 10, 12)
    nconv = [0]
    RC = NB1
    def dm(s, a, j, cur):
        mfma(ACC+8*j+4*a, VFr(s, a), PB + 24*(s & 1) + 4*j, s == 0)
        if cur < nsm: fd()
    for s in range(16):
        g.c(f"D stage {s}")
        g.vwait(f"V{s}")
        A("s_barrier")
        if s in (4, 8, 12): stamp(f"d{s}")
        first = [lambda a=a, e=e: g.ds(f"ds_read_b64_tr_b16 {vr(VFr(s,a)+2*e,2)}, v{30 if a == 0 else 38} offset:{ring_off(s)+e*16384}", f"VF{s}")
                 for a in range(2) for e in range(2)]
        rest = []
        if s == 0: first += p_read_thunks(0)
        if s in convplan:
            rest += w_conv_thunks(nconv[0]); nconv[0] += 1
        if s == 8: rest.append(lambda: xreduce(LS, "v_add_f32", 43))
        if s == 9: rest += [lambda: g.ds(f"ds_write_b32 v27, v{LS[0]}", "sumw"), lambda: g.ds(f"ds_write_b32 v37, v{LS[4]}", "sumw")]
        if s in (11, 13):
            z = (s - 11) // 2
            rest += [lambda z=z: g.ds(f"ds_read_b128 v[12:15], v{25+z}", "sumr"), lambda z=z: g.ds(f"ds_read_b128 v[20:23], v{25+z} offset:16", "sumr")]
        if s:
            mf = [lambda j=j: dm(s-1, 1, j, s) for j in range(6)]
            interleave(mf[:2], first); interleave(mf[2:5], rest); mf[5]()
        else:
            for f in first: f()
        g.lwait(f"VF{s}", f"P{s}")
        A("s_barrier")
        pr = p_read_thunks(s + 1) if s < 15 else []
        dm(s, 0, 0, s); dm(s, 0, 1, s)
        if s + 4 < 16: v_fill(s + 4)
        else: w_ring(s)
        for f in pr[:3]: f()
        dm(s, 0, 2, s); dm(s, 0, 3, s)
        for _ in range(wD.get(s, 0)):
            assert nraw[0] < 6 or s > nsm
            worder.append(nraw[0]); w_raw()
        for f in pr[3:]: f()
        if s in (11, 13):
            z = (s - 11) // 2
            g.lwait("sumr")
            A("v_add_f32 v12, v12, v13"); A("v_add_f32 v14, v14, v15"); A("v_add_f32 v20, v20, v21"); A("v_add_f32 v22, v22, v23")
            A("v_add_f32 v12, v12, v14"); A("v_add_f32 v20, v20, v22"); A("v_add_f32 v12, v12, v20"); A(f"v_rcp_f32 v{RC[4*z]}, v12")
        if s == 14: xbroadcast(RC)
        dm(s, 0, 4, s); dm(s, 0, 5, s)
        if s == nsm - 1: fd.flush()
    for j in range(6):
        dm(15, 1, j, 99)
        if j & 1 and nraw[0] < 12: worder.append(nraw[0]); w_raw()
    while nraw[0] < 12: worder.append(nraw[0]); w_raw()
    stamp("D")
    A("s_lshr_b32 s3, s59, 1"); A("s_sub_u32 s3, s4, s3"); A("s_and_b32 s3, s3, 7")
    A("s_mul_i32 s3, s3, 6144"); A(f"s_add_u32 s3, s3, {O_BASE}"); A("v_add_u32 v39, s3, v18")
    A("s_mul_i32 s56, s7, 86016"); A("s_mul_i32 s3, s4, 12288"); A("s_add_u32 s56, s56, s3")
    A(f"v_mov_b32 v12, {MASKW}"); A("v_mov_b32 v14, 0"); A("v_mov_b32 v15, 0")
    g.ds("ds_write_b64 v12, v[14:15]")
    for j in range(6):
        for f in pack(ACC + 8*j): f()
        g.ds(f"ds_write_b128 v39, {vr(ACC+8*j,4)} offset:{j*1024}")
    A(f"v_add_u32 v39, {O_BASE}, v18")
    g.lwait0(); A("s_barrier")
    stamp("O")
    A("s_cmp_eq_u32 s4, 7")
    A("s_cbranch_scc1 L_w7")
    if eprio:
        A("s_cmp_ge_u32 s4, 4"); A("s_cbranch_scc1 L_noprio"); A("s_setprio 1"); g.lab("L_noprio")
    OB, NOB = 240, 4
    assert sorted(worder) == list(range(16))
    Uord = sorted(range(8), key=lambda U: max(worder.index(2*U), worder.index(2*U+1)))
    ready = [U for U in Uord if U in wreg_of]; late = [U for U in Uord if U not in wreg_of]
    korder = ready + late
    seq = [(p, pos, U, j) for p, js in enumerate(passes) for pos, U in enumerate(korder) for j in js]
    def tile(j): return [48, 64, 80, 144][j & 3]
    def o_read(i):
        _, _, U, j = seq[i]
        g.ds(f"ds_read_b128 {vr(OB+4*(i % NOB),4)}, v39 offset:{(U*6+j)*1024}", f"O{i}")
    def store_thunks(j):
        out = []
        for ct in range(2):
            acc = tile(j) + 8*ct
            for r in range(8): out.append(lambda r=r, acc=acc: A(f"v_mul_f32 v{acc+r}, v{acc+r}, v{RC[j]}"))
            out += pack(acc)
            k = 2*j + ct
            def st(acc=acc, k=k):
                A(f"s_add_u32 s57, s56, {(k >> 2)*4096}")
                g.vm(f"buffer_store_dwordx4 {vr(acc,4)}, v18, s[28:31], s57 offen offset:{(k & 3)*1024} sc1", "ST")
            out.append(st)
        return out
    for i in range(3): o_read(i)
    pend = []; wpend = []
    lstart = max(0, len(ready) - ldist)
    since = 0; lastp = 0
    for i, (p, pos, U, j) in enumerate(seq):
        if p != lastp: since = 0; lastp = p
        if p == 0 and j == passes[0][0]:
            while wpend: wpend.pop(0)()
            if lstart <= pos < lstart + len(late):
                LU = late[pos - lstart]
                if LU < 6: wpend = w_conv_thunks(LU)
                else: wpend = [lambda LU=LU: g.vwait(f"W{LU}")] + w_tr_thunks(LU, 160 + 16*(LU - 6), 35, ring_off(2*LU))
        g.lwait(f"O{i}", f"WF{U}")
        for m in range(4):
            mfma(tile(j) + 4*m, wreg_of[U] + 4*m, OB + 4*(i % NOB), pos == 0)
            if m == 0 and i + 3 < len(seq): o_read(i + 3)
            for _ in range(2):
                if wpend: wpend.pop(0)()
            for _ in range(per):
                if pend: pend.pop(0)()
        since += 1
        if p >= 1 and since == 2:
            for jj in passes[p-1]: pend += store_thunks(jj)
    stamp("E")
    while pend: pend.pop(0)()
    A("s_nop 7")
    for jj in passes[-1]:
        for f in store_thunks(jj): f()
    if eprio: A("s_setprio 0")
    A("v_mov_b32 v14, 1"); A("s_lshl_b32 s3, s7, 2"); A("v_mov_b32 v16, s3"); A("s_lshl_b32 s3, 1, s7"); A("v_mov_b32 v17, s3")
    A("s_mov_b64 exec, 1")
    A("s_waitcnt vmcnt(0)")
    g.vq = []
    A("ds_add_rtn_u32 v15, v12, v14 offset:4")
    A("s_waitcnt lgkmcnt(0)")
    A("v_readfirstlane_b32 s3, v15")
    A("s_cmp_lg_u32 s3, 6")
    A("s_cbranch_scc1 L_nosig")
    A("global_store_dword v16, v14, s[32:33] sc1")
    A("ds_or_b32 v12, v17")
    g.lab("L_nosig")
    A("s_mov_b64 exec, -1")
    stamp("P")
    A("s_cmp_ge_u32 s4, 6"); A("s_cbranch_scc1 L_fin")
    A("v_cmp_gt_u32 vcc, 336, v0")
    A("s_mov_b32 s16, s60"); A("s_mov_b32 s17, s61"); A(f"s_mov_b32 s18, {8*96*896*2}")
    A("s_and_saveexec_b64 s[56:57], vcc")
    A("s_mov_b32 s34, 0"); A("s_mov_b32 s36, 0"); A("s_mov_b32 s58, 0xffff0000")
    g.lab("L_red")
    A("ds_read_b32 v45, v12")
    A("s_waitcnt lgkmcnt(0)")
    A("v_readfirstlane_b32 s35, v45")
    A("s_add_u32 s36, s36, 1")
    A("s_bitcmp1_b32 s35, s7"); A("s_cbranch_scc0 L_red_next")
    A("s_andn2_b32 s37, s35, s34")
    A("s_cbranch_scc0 L_red_next")
    for h in range(16):
        A(f"s_bitcmp1_b32 s37, {h}")
        A(f"s_cbranch_scc0 L_red_s{h}")
        A(f"s_mov_b32 s53, {h*86016}")
        A(f"buffer_load_dwordx4 {vr(48+4*h,4)}, v40, s[28:31], s53 offen sc1")
        g.lab(f"L_red_s{h}")
    A("s_or_b32 s34, s34, s37")
    A("s_cmp_eq_u32 s34, 0xffff")
    A("s_cbranch_scc1 L_red_done")
    g.lab("L_red_next")
    A("s_sleep 1")
    A("s_cmp_lt_u32 s36, 0x400000")
    A("s_cbranch_scc1 L_red")
    g.lab("L_red_done")
    stamp("W")
    A("s_waitcnt vmcnt(0)")
    for h in range(16):
        for j in range(4):
            s = 48 + 4*h + j; t = (120 if h == 0 else 128) + 2*j
            A(f"v_lshlrev_b32 v{t}, 16, v{s}"); A(f"v_and_b32 v{t+1}, s58, v{s}")
        if h:
            for j in range(4): A(f"v_pk_add_f32 {vr(120+2*j,2)}, {vr(120+2*j,2)}, {vr(128+2*j,2)}")
    for j in range(4): A(f"v_cvt_pk_bf16_f32 v{136+j}, v{120+2*j}, v{121+2*j}")
    A("buffer_store_dwordx4 v[136:139], v41, s[16:19], 0 offen")
    A("s_mov_b64 exec, -1")
    A("s_branch L_fin")
    g.lab("L_w7")
    A("s_lshl_b32 s3, s54, 4"); A("v_mov_b32 v42, s3"); A("v_lshlrev_b32 v43, 2, v2")
    A("s_mov_b32 s57, 0")
    g.lab("L_poll0")
    A("global_load_dword v48, v42, s[62:63] sc1")
    A("s_waitcnt vmcnt(0)")
    A("v_readfirstlane_b32 s3, v48")
    A("s_add_u32 s57, s57, 1")
    A("s_cmp_ge_u32 s3, 16")
    A("s_cbranch_scc1 L_poll0_done")
    A("s_sleep 8")
    A("s_cmp_lt_u32 s57, 0x20000")
    A("s_cbranch_scc1 L_poll0")
    g.lab("L_poll0_done")
    g.lab("L_cnt")
    A("ds_read_b32 v45, v12 offset:4"); A("s_waitcnt lgkmcnt(0)"); A("v_readfirstlane_b32 s3, v45")
    A("s_add_u32 s57, s57, 1"); A("s_cmp_ge_u32 s3, 4"); A("s_cbranch_scc1 L_cnt_done")
    A("s_sleep 1"); A("s_cmp_lt_u32 s57, 0x400000"); A("s_cbranch_scc1 L_cnt")
    g.lab("L_cnt_done")
    A("s_mov_b64 exec, 0xffff")
    A("global_load_dword v48, v43, s[32:33] sc1"); A("s_waitcnt vmcnt(0)")
    A("v_cmp_eq_u32 vcc, 1, v48"); A("s_nop 1"); A("v_mov_b32 v47, vcc_lo"); A("ds_or_b32 v12, v47")
    g.lab("L_own")
    A("ds_read_b32 v45, v12"); A("s_waitcnt lgkmcnt(0)"); A("v_readfirstlane_b32 s3, v45")
    A("s_add_u32 s57, s57, 1"); A("s_bitcmp1_b32 s3, s7"); A("s_cbranch_scc1 L_own_done")
    A("s_sleep 1"); A("s_cmp_lt_u32 s57, 0x400000"); A("s_cbranch_scc1 L_own")
    g.lab("L_own_done")
    A("s_mov_b32 s57, 0")
    g.lab("L_poll")
    A("global_load_dword v48, v43, s[32:33] sc1")
    A("s_waitcnt vmcnt(0)")
    A("v_cmp_eq_u32 vcc, 1, v48")
    A("s_add_u32 s57, s57, 1")
    A("s_nop 0")
    A("v_mov_b32 v47, vcc_lo")
    A("ds_or_b32 v12, v47")
    A("s_cmp_eq_u32 vcc_lo, 0xffff")
    A("s_cbranch_scc1 L_poll_done")
    A(f"s_sleep {sleep}")
    A("s_cmp_lt_u32 s57, 0x20000")
    A("s_cbranch_scc1 L_poll")
    g.lab("L_poll_done")
    A("s_waitcnt lgkmcnt(0)")
    A("s_mov_b64 exec, -1")
    g.lab("L_fin")
    if stamps:
        A("s_waitcnt vmcnt(0)")
        stamp("end")
        A("s_waitcnt lgkmcnt(0)")
        A("s_add_u32 s42, s42, 0x8000000"); A("s_addc_u32 s43, s43, 0")
        A("s_lshl_b32 s3, s2, 3"); A("s_add_u32 s3, s3, s4")
        A(f"s_mul_i32 s3, s3, {8*len(stamps)}")
        A("v_mov_b32 v10, s3")
        for j in range(len(stamps)):
            A(f"v_mov_b32 v12, s{64+2*j}"); A(f"v_mov_b32 v13, s{65+2*j}")
            A(f"global_store_dwordx2 v10, v[12:13], s[42:43] offset:{j*8}")
            A("s_nop 1")
    g.lab("L_end")
    A("s_endpgm")
    g.lab("L_code_end")
    g.L.append(f'''.section .rodata,"a"
.p2align 6
.amdhsa_kernel {KN}
  .amdhsa_next_free_vgpr 256
  .amdhsa_next_free_sgpr 102
  .amdhsa_accum_offset 256
  .amdhsa_group_segment_fixed_size 0
  .amdhsa_kernarg_size 104
  .amdhsa_user_sgpr_count 2
  .amdhsa_user_sgpr_kernarg_segment_ptr 1
  .amdhsa_system_sgpr_workgroup_id_x 1
.end_amdhsa_kernel''')
    return finalize("\n".join(g.L) + "\n")

def finalize(s):
    t = s.replace("CODE_BYTES", "0x1000")
    with tempfile.TemporaryDirectory() as d:
        open(d + "/t.s", "w").write(t)
        subprocess.check_call(["clang", "-x", "assembler", "-target", "amdgcn-amd-amdhsa", "-mcpu=gfx950", "-c", d + "/t.s", "-o", d + "/t.o"])
        o = subprocess.check_output(["llvm-objdump", "-t", d + "/t.o"]).decode()
    sym = {l.split()[-1]: int(l.split()[0], 16) for l in o.splitlines() if re.match(r"^[0-9a-f]{16} ", l)}
    n = sym["L_code_end"] - sym["L_pc"] - 4
    assert 0x100 < n < 65536, n
    return s.replace("CODE_BYTES", hex(n))

ALLST = ("start", "a0", "a9", "A", "b4", "B", "C1", "C", "d4", "d8", "d12", "D", "O", "E", "P", "W", "end")
if __name__ == "__main__":
    open("k21.s", "w").write(gen())
    open("k21_st.s", "w").write(gen(stamps=ALLST))
    open("k21_n7.s", "w").write(gen(stamps=ALLST, npre=7))
    open("u21.s", "w").write(gen(stamps=("start", "end")))
    open("u21_n7.s", "w").write(gen(stamps=("start", "end"), npre=7))
```
